```python
import torch

def _softmax(x, axis=-1):
    return torch.softmax(x, dim=axis)
def _gelu(x):
    return torch.nn.functional.gelu(x, approximate="tanh")
def _silu(x):
    return torch.nn.functional.silu(x)
def _sigmoid(x):
    return torch.sigmoid(x)
def _layernorm(x, axis=-1, eps=1e-5):
    m = x.mean(dim=axis, keepdim=True)
    v = x.var(dim=axis, keepdim=True, unbiased=False)
    return (x - m) / torch.sqrt(v + eps)
def _scatter_add(tgt, idx, src, axis=0):
    return tgt.clone().index_add_(axis, idx, src)
def _segment_sum(src, seg, n):
    out = torch.zeros((n,) + src.shape[1:], dtype=src.dtype)
    return out.index_add_(0, seg, src)
def _pad(x, pw):
    flat = tuple(v for pair in reversed(pw) for v in pair)
    return torch.nn.functional.pad(x, flat)

kernel_name = 'standalone__adm_resblock__diffusion'

def setup_inputs():

    _w = (lambda a: (lambda t: t.to(torch.bfloat16) if t.is_floating_point() else t)(torch.as_tensor(a)))
    B, C, HW, E = 2, 320, 64, 1152
    sc = (9.0 * C) ** -0.5
    return {
        "x": _w((lambda *s: torch.randn(*s, dtype=torch.bfloat16) * 0.05)(B, C, HW, HW)),
        "t_emb": _w((lambda *s: torch.randn(*s, dtype=torch.bfloat16) * 0.2)(B, E)),
        "g1": _w(1.0 + 0.1 * (lambda *s: torch.randn(*s, dtype=torch.bfloat16) * 0.2)(C)),
        "be1": _w(0.1 * (lambda *s: torch.randn(*s, dtype=torch.bfloat16) * 0.2)(C)),
        "w1": _w((lambda *s: torch.randn(*s, dtype=torch.bfloat16) * 0.2)(C, C, 3, 3) * sc),
        "w_emb": _w((lambda *s: torch.randn(*s, dtype=torch.bfloat16) * 0.2)(E, C) * (E ** -0.5)),
        "g2": _w(1.0 + 0.1 * (lambda *s: torch.randn(*s, dtype=torch.bfloat16) * 0.2)(C)),
        "be2": _w(0.1 * (lambda *s: torch.randn(*s, dtype=torch.bfloat16) * 0.2)(C)),
        "w2": _w((lambda *s: torch.randn(*s, dtype=torch.bfloat16) * 0.2)(C, C, 3, 3) * sc),
    }

def reference(x, t_emb, g1, be1, w1, w_emb, g2, be2, w2):
    B, C, H, W = x.shape
    G, eps = 4, 1e-5
    def gn(z, gamma, beta):
        zr = z.reshape(B, G, (C // G) * H * W)
        mu = zr.mean(-1).reshape(B, G, 1)
        var = ((zr - mu) ** 2).mean(-1).reshape(B, G, 1)
        zn = ((zr - mu) / torch.sqrt(var + eps)).reshape(B, C, H, W)
        return zn * gamma.reshape(1, C, 1, 1) + beta.reshape(1, C, 1, 1)
    def conv3(z, w):
        zp = _pad(z, ((0, 0), (0, 0), (1, 1), (1, 1)))
        taps = [torch.einsum("bchw,oc->bohw", zp[:, :, i:i+H, j:j+W], w[:, :, i, j]) for i in range(3) for j in range(3)]
        out = taps[0]
        for t in taps[1:]:
            out = out + t
        return out
    h = conv3(_silu(gn(x, g1, be1)), w1)
    emb = _silu(t_emb) @ w_emb
    h = h + emb.reshape(B, C, 1, 1)
    h = conv3(_silu(gn(h, g2, be2)), w2)
    return x + h
```

```python
import re

TRANS = ("v_exp_f32", "v_log_f32", "v_rcp_f32", "v_rsq_f32", "v_sqrt_f32", "v_sin_f32", "v_cos_f32",
         "v_rcp_iflag_f32")

_REG = re.compile(r"^(-|abs\()?([vsa])(\d+)\)?$")
_RNG = re.compile(r"^(-|abs\()?([vsa])\[(\d+):(\d+)\]\)?$")


def regs_of(op):
    op = op.strip()
    if op == "vcc":
        return {("s", "vcc_lo"), ("s", "vcc_hi")}
    if op == "exec":
        return {("s", "exec_lo"), ("s", "exec_hi")}
    if op in ("vcc_lo", "vcc_hi", "exec_lo", "exec_hi", "m0"):
        return {("s", op)}
    m = _REG.match(op)
    if m:
        return {(m.group(2), int(m.group(3)))}
    m = _RNG.match(op)
    if m:
        return {(m.group(2), i) for i in range(int(m.group(3)), int(m.group(4)) + 1)}
    return set()


def split_ops(rest):
    ops, depth, cur = [], 0, ""
    for ch in rest:
        if ch == "[" or ch == "(":
            depth += 1
        elif ch == "]" or ch == ")":
            depth -= 1
        if ch == "," and depth == 0:
            ops.append(cur.strip())
            cur = ""
        else:
            cur += ch
    if cur.strip():
        ops.append(cur.strip())
    mods = ""
    if ops:
        parts = ops[-1].split(None, 1)
        ops[-1] = parts[0]
        if len(parts) > 1:
            mods = parts[1]
    return ops, mods


class Ins:
    def __init__(self, text):
        self.text = text
        t = text.split(";")[0].strip()
        self.is_label = t.endswith(":")
        self.is_dir = t.startswith(".")
        self.mn = ""
        self.w = set()
        self.r = set()
        self.kind = "other"
        self.states = 0
        self.mods = ""
        self.srcc = set()
        self.srcab = set()
        self.data = set()
        if not t or self.is_label or self.is_dir:
            return
        p = t.split(None, 1)
        mn = p[0]
        self.mn = mn
        ops, mods = split_ops(p[1]) if len(p) > 1 else ([], "")
        self.mods = mods
        self.ops = ops
        self.states = 1
        R = [regs_of(o) for o in ops]
        if mn == "s_nop":
            self.states = int(ops[0], 0) + 1
            self.kind = "nop"
        elif mn.startswith("v_mfma"):
            self.kind = "mfma"
            self.w = R[0]
            self.srcab = R[1] | R[2]
            self.srcc = R[3]
            self.r = self.srcab | self.srcc
        elif mn.startswith("v_"):
            self.kind = "valu"
            base = mn.replace("_e32", "").replace("_e64", "").replace("_dpp", "")
            self.base = base
            self.trans = base in TRANS
            self.dot = base.startswith("v_dot")
            self.dpp = "_dpp" in mn or any(k in mods for k in ("row_", "quad_perm", "wave_"))
            if base.startswith("v_cmp"):
                self.w = R[0]
                self.r = set().union(*R[1:]) if len(R) > 1 else set()
            elif base.startswith("v_permlane") and "swap" in base:
                self.w = R[0] | R[1]
                self.r = R[0] | R[1]
            elif base in ("v_add_co_u32", "v_sub_co_u32", "v_subrev_co_u32", "v_addc_co_u32", "v_subb_co_u32"):
                self.w = R[0] | R[1]
                self.r = set().union(*R[2:])
            else:
                self.w = R[0]
                self.r = set().union(*R[1:]) if len(R) > 1 else set()
                if base in ("v_fmac_f32", "v_dot2c_f32_bf16", "v_writelane_b32") or self.dpp:
                    self.r |= R[0]
        elif mn.startswith("buffer_") or mn.startswith("global_") or mn.startswith("flat_"):
            self.kind = "vmem"
            allr = set().union(*R) if R else set()
            is_lds = re.search(r"\blds\b", mods) is not None
            self.is_lds = is_lds
            if "load" in mn and not is_lds:
                self.w = R[0]
                self.r = set().union(*R[1:])
                if "d16" in mn:
                    self.r |= R[0]
            elif is_lds:
                self.r = allr | {("s", "m0")}
            elif mn.startswith("buffer_"):
                self.r = allr
                self.data = R[0]
                if "atomic" in mn and re.search(r"\bsc0\b", mods):
                    self.w = R[0]
            else:
                if "atomic" in mn and re.search(r"\bsc0\b", mods):
                    self.w = R[0]
                    self.r = set().union(*R[1:])
                    self.data = R[2]
                else:
                    self.r = allr
                    self.data = R[1]
            self.wide = any(k in mn for k in ("x3", "x4")) and ("store" in mn)
        elif mn.startswith("ds_"):
            self.kind = "ds"
            if "read" in mn or "permute" in mn or "swizzle" in mn:
                self.w = R[0]
                self.r = set().union(*R[1:]) if len(R) > 1 else set()
            else:
                self.r = set().union(*R)
        elif mn.startswith("s_"):
            self.kind = "salu"
            if mn.startswith(("s_cmp", "s_cbranch", "s_branch", "s_waitcnt", "s_barrier", "s_endpgm", "s_sleep",
                              "s_setprio", "s_bitcmp")):
                self.r = set().union(*R) if R else set()
            elif mn.startswith("s_load") or mn.startswith("s_buffer_load"):
                self.kind = "smem"
                self.w = R[0]
                self.r = set().union(*R[1:])
            else:
                self.w = R[0] if R else set()
                self.r = set().union(*R[1:]) if len(R) > 1 else set()
                if "saveexec" in mn:
                    self.w |= {("s", "exec_lo"), ("s", "exec_hi")}


def _vec(s):
    return {x for x in s if x[0] in "va"}


def _sca(s):
    return {x for x in s if x[0] == "s"}


def required_states(p, c):
    need = 0
    if p.kind == "valu":
        pv, ps = _vec(p.w), _sca(p.w)
        if c.kind == "valu":
            if c.base in ("v_readlane_b32", "v_readfirstlane_b32") and pv & c.r:
                need = max(need, 1)
            if c.dpp and pv & c.r:
                need = max(need, 2)
            if c.base.startswith("v_permlane") and pv & c.r:
                need = max(need, 2)
            if ps & c.r:
                need = max(need, 4 if c.base in ("v_readlane_b32", "v_writelane_b32") else 2)
            if c.base in ("v_cndmask_b32", "v_addc_co_u32", "v_subb_co_u32") and ps & {("s", "vcc_lo")} and \
                    not any(o.startswith("s[") for o in c.ops):
                need = max(need, 2)
            if p.trans and not c.trans and pv & c.r:
                need = max(need, 1)
            if p.dot and pv & (c.r | c.w):
                same_c = c.base == p.base and len(c.ops) == 4 and not (pv & (regs_of(c.ops[1]) | regs_of(c.ops[2])))
                if not same_c:
                    need = max(need, 3)
        if c.kind == "mfma" and pv & c.r:
            need = max(need, 2)
        if c.kind == "vmem" and ps & c.r:
            need = max(need, 5)
        if c.kind in ("vmem", "ds") and p.trans and pv & c.r:
            need = max(need, 1)
        if c.kind in ("vmem", "ds", "mfma") and p.dot and pv & c.r:
            need = max(need, 3)
        if c.kind in ("salu", "smem") and ps & c.r:
            need = max(need, 1)
    if p.kind == "mfma":
        d = p.w
        if c.kind == "mfma":
            if d & c.srcab:
                need = max(need, 8)
            if d & c.srcc and c.srcc != d:
                need = max(need, 6)
        elif c.kind == "valu":
            if d & (c.r | c.w):
                need = max(need, 8)
            if p.srcc & c.w:
                need = max(need, 3)
        elif c.kind in ("vmem", "ds"):
            if d & (c.r | c.w):
                need = max(need, 8)
    if p.kind == "vmem" and getattr(p, "wide", False):
        if c.kind == "valu" and p.data & c.w:
            need = max(need, 2)
        elif p.data & c.w:
            need = max(need, 1)
    if p.kind == "salu" and ("s", "m0") in p.w:
        if c.kind == "vmem" and getattr(c, "is_lds", False):
            need = max(need, 1)
    return need


class Asm:
    def __init__(self):
        self.lines = []
        self.vmq = []
        self.lgq = []
        self.inserted = []
        self.issued = set()

    def __call__(self, s, vm=None, lg=None):
        for ln in s.split("\n"):
            ln = ln.strip()
            if ln:
                self.lines.append(ln)
        if vm is not None:
            self.vmq.append(vm)
            self.issued.add(vm)
        if lg is not None:
            self.lgq.append(lg)
            self.issued.add(lg)

    def comment(self, s):
        self.lines.append("; " + s)

    def label(self, s):
        self.lines.append(s + ":")

    def _n_after(self, q, tags):
        if not isinstance(tags, (list, tuple, set)):
            tags = [tags]
        for t in tags:
            assert t in self.issued, f"waiting for {t} which was never issued"
        last = -1
        for i, t in enumerate(q):
            if t in tags:
                last = i
        return last

    def wait(self, vm=None, lg=None):
        parts = []
        if vm is not None:
            last = self._n_after(self.vmq, vm)
            if last >= 0:
                n = len(self.vmq) - 1 - last
                assert n <= 63
                parts.append(f"vmcnt({n})")
                self.vmq = self.vmq[last + 1:]
        if lg is not None:
            last = self._n_after(self.lgq, lg)
            if last >= 0:
                n = len(self.lgq) - 1 - last
                if n > 15:
                    n = 15
                    self.lgq = self.lgq[len(self.lgq) - 15:]
                else:
                    self.lgq = self.lgq[last + 1:]
                parts.append(f"lgkmcnt({n})")
        if parts:
            self.lines.append("s_waitcnt " + " ".join(parts))

    def wait_all(self, vm=True, lg=True):
        parts = []
        if vm:
            parts.append("vmcnt(0)")
            self.vmq = []
        if lg:
            parts.append("lgkmcnt(0)")
            self.lgq = []
        self.lines.append("s_waitcnt " + " ".join(parts))

    def finalize(self):
        out = []
        window = []
        for ln in self.lines:
            ins = Ins(ln)
            if ins.states == 0:
                out.append(ln)
                continue
            need = 0
            dist = 0
            for p in reversed(window):
                req = required_states(p, ins)
                if req - dist > need:
                    need = req - dist
                dist += p.states
                if dist > 24:
                    break
            if need > 0:
                nop = f"s_nop {need - 1}"
                out.append(nop)
                self.inserted.append((need, ln))
                window.append(Ins(nop))
            out.append(ln)
            window.append(ins)
            if len(window) > 40:
                window = window[-30:]
        return "\n".join(("    " + l if not (l.endswith(":") or l.startswith(".")) else l) for l in out) + "\n"
```

```python
import sys
import struct
from asmlib import Asm

WP_BYTES = 4 * 4 * 23 * 5 * 1024
WP1_OFF = 0
WP2_OFF = 0x200000
ACT_BYTES = 2 * 40 * 4096 * 16
A1_OFF = 0x400000
A2_OFF = 0xA00000
EMB_OFF = 0x1000000
ES = 2
EMB_BYTES = ES * 640 * 4
X_BYTES = 2 * 320 * 4096 * 2
W_BYTES = 320 * 320 * 9 * 2
OOB = 0x7FFF0000

N_X_WG = 256
N_W_WG = 40
N_E_WG = 10 * ES
K1_GRID = N_X_WG + N_W_WG + N_E_WG

LOG2E = 1.4426950408889634
NGRP = 80 * 4096


def f32(x):
    return "0x%08x" % struct.unpack("<I", struct.pack("<f", x))[0]


def srd(a, d, base, nbytes, off=0):
    if off:
        a(f"s_add_u32 s{d}, s{base}, {hex(off)}")
        a(f"s_addc_u32 s{d+1}, s{base+1}, 0")
    else:
        a(f"s_mov_b32 s{d}, s{base}")
        a(f"s_mov_b32 s{d+1}, s{base+1}")
    a(f"s_mov_b32 s{d+2}, {hex(nbytes)}")
    a(f"s_mov_b32 s{d+3}, 0x00020000")


P_X, P_T, P_G1, P_B1, P_W1, P_WE, P_G2, P_B2, P_W2, P_OUT, P_DBG, P_WS = [16 + 2 * i for i in range(12)]


def load_kernargs(a):
    a("s_load_dwordx16 s[16:31], s[0:1], 0")
    a("s_load_dwordx8 s[32:39], s[0:1], 64")


def wave_reduce2(a, v1, v2, full=True):
    steps = ["row_shr:1 row_mask:0xf bank_mask:0xf bound_ctrl:0",
             "row_shr:2 row_mask:0xf bank_mask:0xf bound_ctrl:0",
             "row_shr:4 row_mask:0xf bank_mask:0xf bound_ctrl:0",
             "row_shr:8 row_mask:0xf bank_mask:0xf bound_ctrl:0"]
    if full:
        steps += ["row_bcast:15 row_mask:0xa bank_mask:0xf",
                  "row_bcast:31 row_mask:0xc bank_mask:0xf"]
    for st in steps:
        a(f"v_add_f32_dpp v{v1}, v{v1}, v{v1} {st}")
        a(f"v_add_f32_dpp v{v2}, v{v2}, v{v2} {st}")


def group_barrier_stats(a, pfx, vS1, vS2, vT, s_grp, nwg, s_tmp, lds_out):
    a(f"v_readlane_b32 s{s_tmp}, v{vS1}, 15")
    a(f"v_readlane_b32 s{s_tmp+1}, v{vS2}, 15")
    a(f"s_lshl_b32 s{s_tmp+2}, s{s_grp}, 5")
    a(f"v_mov_b32 v{vT+4}, s{s_tmp}")
    a(f"v_writelane_b32 v{vT+4}, s{s_tmp+1}, 1")
    a(f"v_mbcnt_lo_u32_b32 v{vT+5}, -1, 0")
    a(f"v_lshlrev_b32 v{vT+5}, 2, v{vT+5}")
    a(f"v_add_u32 v{vT+5}, s{s_tmp+2}, v{vT+5}")
    a(f"v_mov_b32 v{vT+6}, 1")
    a("s_mov_b64 exec, 3")
    a(f"global_atomic_add_f32 v{vT+5}, v{vT+4}, s[{P_DBG}:{P_DBG+1}]")
    a("s_waitcnt vmcnt(0)")
    a("s_mov_b64 exec, 1")
    a(f"global_atomic_add v{vT+5}, v{vT+6}, s[{P_DBG}:{P_DBG+1}] offset:8")
    a(f"s_mov_b32 s{s_tmp+3}, 0")
    a.label(f"{pfx}_poll")
    a(f"global_load_dwordx4 v[{vT}:{vT+3}], v{vT+5}, s[{P_DBG}:{P_DBG+1}] sc1")
    a("s_waitcnt vmcnt(0)")
    a(f"v_readfirstlane_b32 s{s_tmp}, v{vT+2}")
    a(f"s_add_u32 s{s_tmp+3}, s{s_tmp+3}, 1")
    a(f"s_cmp_ge_u32 s{s_tmp}, {nwg}")
    a(f"s_cbranch_scc1 {pfx}_polldone")
    a(f"s_cmp_ge_u32 s{s_tmp+3}, 0x100000")
    a(f"s_cbranch_scc1 {pfx}_polldone")
    a("s_sleep 1")
    a(f"s_branch {pfx}_poll")
    a.label(f"{pfx}_polldone")
    a(f"v_mul_f32 v{vT}, {f32(1.0 / NGRP)}, v{vT}")
    a(f"v_mul_f32 v{vT+1}, {f32(1.0 / NGRP)}, v{vT+1}")
    a(f"v_fma_f32 v{vT+1}, -v{vT}, v{vT}, v{vT+1}")
    a(f"v_max_f32 v{vT+1}, 0, v{vT+1}")
    a(f"v_add_f32 v{vT+1}, {f32(1e-5)}, v{vT+1}")
    a(f"v_rsq_f32 v{vT+1}, v{vT+1}")
    a(f"v_mov_b32 v{vT+5}, {lds_out}")
    a(f"ds_write_b64 v{vT+5}, v[{vT}:{vT+1}]")
    a("s_mov_b64 exec, -1")
    a("s_waitcnt lgkmcnt(0)")


def gen_prep():
    a = Asm()
    a.label("prep_kernel")
    load_kernargs(a)
    a("v_lshrrev_b32 v1, 6, v0")
    a("v_and_b32 v2, 63, v0")
    a("v_readfirstlane_b32 s3, v1")
    a(f"s_cmp_lt_u32 s2, {N_X_WG}")
    a("s_cbranch_scc1 prep_x")
    a(f"s_cmp_lt_u32 s2, {N_X_WG + N_W_WG}")
    a("s_cbranch_scc1 prep_w")
    a(f"s_cmp_lt_u32 s2, {K1_GRID}")
    a("s_cbranch_scc1 prep_e")
    a("s_endpgm")

    a.label("prep_x")
    a("s_lshr_b32 s4, s2, 5")
    a("s_and_b32 s6, s2, 31")
    a("s_mul_i32 s7, s4, 10")
    a("s_add_u32 s7, s7, s3")
    a("s_and_b32 s5, s4, 3")
    a("s_mul_i32 s5, s5, 10")
    a("s_add_u32 s5, s5, s3")
    a("s_lshl_b32 s5, s5, 4")
    a("s_lshl_b32 s9, s7, 16")
    a("s_lshl_b32 s10, s6, 8")
    a("s_add_u32 s44, s9, s10")
    for j in range(1, 8):
        a(f"s_add_u32 s{44+j}, s44, {j*8192}")
    a("s_lshl_b32 s10, s6, 11")
    a("s_add_u32 s60, s9, s10")
    a("v_lshlrev_b32 v3, 2, v2")
    a("v_lshlrev_b32 v4, 5, v2")
    a("s_waitcnt lgkmcnt(0)")
    srd(a, 40, P_X, X_BYTES)
    a(f"s_load_dwordx4 s[52:55], s[{P_G1}:{P_G1+1}], s5")
    a(f"s_load_dwordx4 s[56:59], s[{P_B1}:{P_B1+1}], s5")
    for j in range(8):
        a(f"buffer_load_dword v{8+j}, v3, s[40:43], s{44+j} offen", vm=f"x{j}")
    srd(a, 64, P_WS, ACT_BYTES, A1_OFF)
    a("v_mov_b32 v5, 0x3f803f80")
    a("v_mov_b32 v6, 0")
    a("v_mov_b32 v7, 0")
    for j in range(8):
        a.wait(vm=f"x{j}")
        a(f"v_dot2_f32_bf16 v6, v{8+j}, v5, v6")
        a(f"v_dot2_f32_bf16 v7, v{8+j}, v{8+j}, v7")
        a(f"v_lshlrev_b32 v{16+2*j}, 16, v{8+j}")
        a(f"v_and_b32 v{17+2*j}, 0xffff0000, v{8+j}")
    wave_reduce2(a, 6, 7)
    a("s_lshl_b32 s8, s3, 3")
    a("v_mov_b32 v5, s8")
    a("s_mov_b32 exec_lo, 0")
    a("s_mov_b32 exec_hi, 0x80000000")
    a("ds_write_b64 v5, v[6:7]")
    a("s_mov_b64 exec, -1")
    a("s_waitcnt lgkmcnt(0)")
    a("s_barrier")
    a("s_cmp_lg_u32 s3, 0")
    a("s_cbranch_scc1 prep_x_wait")
    a("v_mov_b32 v6, 0")
    a("v_mov_b32 v7, 0")
    a("v_lshlrev_b32 v5, 3, v2")
    a("s_mov_b64 exec, 0x3ff")
    a("ds_read_b64 v[6:7], v5")
    a("s_mov_b64 exec, -1")
    a("s_waitcnt lgkmcnt(0)")
    wave_reduce2(a, 6, 7, full=False)
    group_barrier_stats(a, "prep", 6, 7, 32, 4, 32, 68, 128)
    a.label("prep_x_wait")
    a("s_barrier")
    a("v_mov_b32 v5, 128")
    a("ds_read_b64 v[6:7], v5")
    for j in range(8):
        sg, sb = 52 + j // 2, 56 + j // 2
        if j % 2 == 0:
            a(f"s_lshl_b32 s{72+j}, s{sg}, 16")
            a(f"s_lshl_b32 s{80+j}, s{sb}, 16")
        else:
            a(f"s_and_b32 s{72+j}, s{sg}, 0xffff0000")
            a(f"s_and_b32 s{80+j}, s{sb}, 0xffff0000")
    a("s_waitcnt lgkmcnt(0)")
    for j in range(8):
        r = 32 + 4 * j
        a(f"v_mul_f32 v{r}, s{72+j}, v7")
        a(f"v_mov_b32 v{r+1}, s{80+j}")
        a(f"v_fma_f32 v{r+1}, -v6, v{r}, v{r+1}")
        a(f"v_mul_f32 v{r+2}, {f32(-LOG2E)}, v{r}")
        a(f"v_mul_f32 v{r+3}, {f32(-LOG2E)}, v{r+1}")
    for j in range(8):
        r = 32 + 4 * j
        x = 16 + 2 * j
        t = 8 + 2 * (j % 4)
        a(f"v_pk_fma_f32 v[{t}:{t+1}], v[{x}:{x+1}], v[{r+2}:{r+3}], v[{r+2}:{r+3}] op_sel:[0,0,1] op_sel_hi:[1,0,1]")
        a(f"v_pk_fma_f32 v[{x}:{x+1}], v[{x}:{x+1}], v[{r}:{r+1}], v[{r}:{r+1}] op_sel:[0,0,1] op_sel_hi:[1,0,1]")
        a(f"v_exp_f32 v{t}, v{t}")
        a(f"v_exp_f32 v{t+1}, v{t+1}")
        a(f"v_pk_add_f32 v[{t}:{t+1}], v[{t}:{t+1}], 1.0 op_sel_hi:[1,0]")
        a(f"v_rcp_f32 v{t}, v{t}")
        a(f"v_rcp_f32 v{t+1}, v{t+1}")
        a(f"v_pk_mul_f32 v[{x}:{x+1}], v[{x}:{x+1}], v[{t}:{t+1}]")
    for q in range(4):
        a(f"v_cvt_pk_bf16_f32 v{32+q}, v{16+4*q}, v{18+4*q}")
        a(f"v_cvt_pk_bf16_f32 v{36+q}, v{17+4*q}, v{19+4*q}")
    a("buffer_store_dwordx4 v[32:35], v4, s[64:67], s60 offen")
    a("buffer_store_dwordx4 v[36:39], v4, s[64:67], s60 offen offset:16")
    a("s_endpgm")

    a.label("prep_w")
    a(f"s_sub_u32 s4, s2, {N_X_WG}")
    a("s_cmp_ge_u32 s4, 20")
    a("s_cselect_b32 s5, 1, 0")
    a("s_mul_i32 s6, s5, 20")
    a("s_sub_u32 s4, s4, s6")
    a("s_mul_i32 s6, s4, 52429")
    a("s_lshr_b32 s6, s6, 18")
    a("s_mul_i32 s7, s6, 5")
    a("s_sub_u32 s7, s4, s7")
    a("v_and_b32 v3, 15, v2")
    a("v_lshrrev_b32 v4, 4, v2")
    a("s_lshl_b32 s8, s3, 2")
    a("v_add_u32 v4, s8, v4")
    a("s_mul_i32 s9, s4, 92160")
    a("v_mul_u32_u24 v5, 5760, v3")
    a("v_mul_u32_u24 v6, 144, v4")
    a("v_add3_u32 v5, v5, v6, s9")
    a("v_mul_u32_u24 v6, 6554, v4")
    a("v_lshrrev_b32 v6, 16, v6")
    a("v_mul_u32_u24 v7, 10, v6")
    a("v_sub_u32 v7, v4, v7")
    a("s_waitcnt lgkmcnt(0)")
    a("s_cmp_eq_u32 s5, 0")
    a(f"s_cselect_b32 s40, s{P_W1}, s{P_W2}")
    a(f"s_cselect_b32 s41, s{P_W1+1}, s{P_W2+1}")
    a(f"s_mov_b32 s42, {hex(W_BYTES)}")
    a("s_mov_b32 s43, 0x00020000")
    for k in range(9):
        a(f"buffer_load_dwordx4 v[{16+4*k}:{19+4*k}], v5, s[40:43], 0 offen offset:{16*k}")
    a(f"s_cselect_b32 s10, {hex(WP1_OFF)}, {hex(WP2_OFF)}")
    a(f"s_add_u32 s44, s{P_WS}, s10")
    a(f"s_addc_u32 s45, s{P_WS+1}, 0")
    a(f"s_mov_b32 s46, {hex(WP_BYTES)}")
    a("s_mov_b32 s47, 0x00020000")
    a("s_mul_i32 s11, s6, 460")
    a("s_add_u32 s11, s11, s7")
    a("s_lshl_b32 s11, s11, 10")
    a("v_mul_u32_u24 v8, 117760, v6")
    a("v_lshl_add_u32 v8, v3, 4, v8")
    a("v_add_u32 v8, s11, v8")
    a("v_lshrrev_b32 v9, 2, v7")
    a("v_mul_u32_u24 v9, 46080, v9")
    a("v_and_b32 v10, 3, v7")
    a("v_lshl_add_u32 v9, v10, 8, v9")
    a("v_add_u32 v8, v8, v9")
    a("v_cmp_le_u32 vcc, 8, v7")
    a("v_cndmask_b32 v11, 0, 1, vcc")
    a("s_mov_b32 s12, 0x07060100")
    a("s_mov_b32 s13, 0x05040302")
    pair = {0: (0, 0), 1: (0, 1), 3: (1, 0), 4: (1, 1), 6: (2, 0), 7: (2, 1), 2: (3, 0), 5: (3, 1), 8: (4, 0)}
    a("s_waitcnt vmcnt(0)")
    for t in range(9):
        o = 52 + 4 * (t % 2)
        for q in range(4):
            X = 16 + 9 * q + t // 2
            Y = 16 + 9 * q + (9 + t) // 2
            a(f"v_perm_b32 v{o+q}, v{Y}, v{X}, s{12 + (t % 2)}")
        offa = t * 5120
        offb = pair[t][0] * 5120 + pair[t][1] * 512
        va = 12 + (t % 2)
        a(f"s_mov_b32 s14, {offb - offa}")
        a(f"v_mad_i32_i24 v{va}, v11, s14, v8")
        a(f"s_mov_b32 s15, {offa}")
        a(f"buffer_store_dwordx4 v[{o}:{o+3}], v{va}, s[44:47], s15 offen")
    for q in range(4):
        a(f"v_mov_b32 v{60+q}, 0")
    a(f"v_mov_b32 v14, {hex(OOB)}")
    a("v_cndmask_b32 v14, v14, v8, vcc")
    a(f"s_mov_b32 s15, {4*5120+512}")
    a("buffer_store_dwordx4 v[60:63], v14, s[44:47], s15 offen")
    a("s_endpgm")

    a.label("prep_e")
    NP = 1152 // ES // 144
    a(f"s_sub_u32 s4, s2, {N_X_WG + N_W_WG}")
    a("s_mul_i32 s5, s4, 6554")
    a("s_lshr_b32 s5, s5, 16")
    a("s_mul_i32 s6, s5, 10")
    a("s_sub_u32 s4, s4, s6")
    a("s_cmp_eq_u32 s3, 9")
    a("s_cbranch_scc1 prep_e_sync")
    a("v_lshrrev_b32 v3, 2, v0")
    a("v_and_b32 v4, 3, v0")
    a(f"s_mul_i32 s7, s5, {1152 // ES}")
    a("v_add_u32 v3, s7, v3")
    a("v_mul_u32_u24 v5, 640, v3")
    a("v_lshl_add_u32 v5, v4, 4, v5")
    a("s_lshl_b32 s8, s4, 6")
    a("v_add_u32 v5, s8, v5")
    a("v_lshlrev_b32 v6, 1, v3")
    a("s_waitcnt lgkmcnt(0)")
    srd(a, 40, P_WE, 1152 * 320 * 2)
    srd(a, 44, P_T, 2 * 1152 * 2)
    for p in range(NP):
        a(f"s_mov_b32 s{48+p}, {p*144*640}")
    for p in range(NP):
        a(f"buffer_load_ushort v{8+2*p}, v6, s[44:47], 0 offen offset:{p*288}")
        a(f"buffer_load_ushort v{9+2*p}, v6, s[44:47], 0 offen offset:{p*288+2304}")
    for p in range(NP):
        a(f"buffer_load_dwordx4 v[{16+4*p}:{19+4*p}], v5, s[40:43], s{48+p} offen")
    for k in range(16):
        a(f"v_mov_b32 v{32+k}, 0")
    a(f"s_waitcnt vmcnt({NP})")
    for k in range(2 * NP):
        r = 8 + k
        a(f"v_lshlrev_b32 v{r}, 16, v{r}")
        a(f"v_mul_f32 v7, {f32(-LOG2E)}, v{r}")
        a("v_exp_f32 v7, v7")
        a("v_add_f32 v7, 1.0, v7")
        a("v_rcp_f32 v7, v7")
        a(f"v_mul_f32 v{r}, v{r}, v7")
        a(f"v_cvt_pk_bf16_f32 v{r}, v{r}, v{r}")
        a(f"v_lshlrev_b32 v{r}, 16, v{r}")
    a("s_waitcnt vmcnt(0)")
    for p in range(NP):
        for q in range(4):
            w = 16 + 4 * p + q
            a(f"v_lshlrev_b32 v48, 16, v{w}")
            a(f"v_and_b32 v49, 0xffff0000, v{w}")
            for b in range(2):
                a(f"v_fmac_f32 v{32+8*b+2*q}, v{8+2*p+b}, v48")
                a(f"v_fmac_f32 v{33+8*b+2*q}, v{8+2*p+b}, v49")
    for st in ("row_ror:4", "row_ror:8"):
        for k in range(16):
            a(f"v_add_f32_dpp v{32+k}, v{32+k}, v{32+k} {st} row_mask:0xf bank_mask:0xf")
    a("v_lshrrev_b32 v5, 4, v0")
    a("v_lshlrev_b32 v5, 8, v5")
    a("v_lshl_add_u32 v5, v4, 6, v5")
    a("s_mov_b32 exec_lo, 0x000f000f")
    a("s_mov_b32 exec_hi, 0x000f000f")
    for k in range(4):
        a(f"ds_write_b128 v5, v[{32+4*k}:{35+4*k}] offset:{16*k}")
    a("s_mov_b64 exec, -1")
    a("s_waitcnt lgkmcnt(0)")
    a.label("prep_e_sync")
    a("s_barrier")
    a("s_cmp_lg_u32 s3, 0")
    a("s_cbranch_scc1 prep_e_end")
    a("v_lshlrev_b32 v5, 2, v2")
    for rr in range(36):
        a(f"ds_read_b32 v{8+rr}, v5 offset:{rr*256}")
    a("s_waitcnt lgkmcnt(0)")
    for rr in range(1, 36):
        a(f"v_add_f32 v8, v8, v{8+rr}")
    a("v_lshrrev_b32 v3, 4, v2")
    a("v_bfe_u32 v4, v2, 3, 1")
    a("v_and_b32 v6, 7, v2")
    a("v_mul_u32_u24 v4, 320, v4")
    a("v_lshl_add_u32 v4, v3, 3, v4")
    a("v_add_u32 v4, v4, v6")
    a("s_mul_i32 s7, s5, 640")
    a("s_lshl_b32 s8, s4, 5")
    a("s_add_u32 s7, s7, s8")
    a("v_add_u32 v4, s7, v4")
    a("v_lshlrev_b32 v4, 2, v4")
    srd(a, 40, P_WS, EMB_BYTES, EMB_OFF)
    a("buffer_store_dword v8, v4, s[40:43], 0 offen")
    a.label("prep_e_end")
    a("s_endpgm")
    return a


NKS = 23
DEPTH = 8
ACC0 = 64
A_B0 = 0
A_A0 = 160
SLAB = 3072
WREG = 40960
XOFF = 2 * SLAB
TAIL_PAIRS = [(0, 1), (3, 4), (6, 7), (2, 5), (8, None)]


def tapoff(t):
    return ((t // 3) * 18 + (t % 3)) * 16


def acc(slot, n):
    r = ACC0 + (slot * 5 + n) * 4
    return f"v[{r}:{r+3}]"


def accr(slot, n):
    return ACC0 + (slot * 5 + n) * 4


def breg(ks, n):
    r = A_B0 + (ks % DEPTH) * 20 + n * 4
    return f"a[{r}:{r+3}]"


def areg(i):
    r = A_A0 + i * 4
    return f"a[{r}:{r+3}]"


def gen_conv(which):
    a = Asm()
    name = f"conv{which}_kernel"
    pfx = f"c{which}"
    a.label(name)
    a("s_cmp_ge_u32 s2, 256")
    a(f"s_cbranch_scc1 {pfx}_end")
    load_kernargs(a)
    S_W, S_NB, S_B, S_Y0, S_X0 = 3, 4, 5, 6, 7
    a("v_lshrrev_b32 v1, 6, v0")
    a("v_and_b32 v2, 63, v0")
    a(f"v_readfirstlane_b32 s{S_W}, v1")
    a(f"s_lshr_b32 s{S_NB}, s2, 6")
    a(f"s_bfe_u32 s{S_B}, s2, 0x10002")
    a("s_and_b32 s8, s2, 3")
    a("s_bfe_u32 s9, s2, 0x10005")
    a("s_lshl_b32 s8, s8, 4")
    a("s_lshl_b32 s9, s9, 3")
    a(f"s_add_u32 s{S_Y0}, s8, s9")
    a("s_bfe_u32 s9, s2, 0x20003")
    a(f"s_lshl_b32 s{S_X0}, s9, 4")
    S_LB = 8
    a(f"s_mul_i32 s{S_LB}, s{S_W}, {WREG}")
    a(f"s_sub_u32 s9, s{S_Y0}, 1")
    a(f"s_sub_u32 s10, s{S_X0}, 1")
    a(f"v_mov_b32 v10, {hex(OOB)}")
    for k in range(3):
        vq, vr, vc = 7, 8, 9
        a(f"v_add_u32 v{vq}, {64*k}, v2")
        a(f"v_mul_u32_u24 v{vr}, 3641, v{vq}")
        a(f"v_lshrrev_b32 v{vr}, 16, v{vr}")
        a(f"v_mul_u32_u24 v{vc}, 18, v{vr}")
        a(f"v_sub_u32 v{vc}, v{vq}, v{vc}")
        a(f"v_add_u32 v{vr}, s9, v{vr}")
        a(f"v_add_u32 v{vc}, s10, v{vc}")
        a(f"v_lshl_add_u32 v{4+k}, v{vr}, 6, v{vc}")
        a(f"v_lshlrev_b32 v{4+k}, 4, v{4+k}")
        a(f"v_max_u32 v{vr}, v{vr}, v{vc}")
        a(f"v_cmp_gt_u32 vcc, 64, v{vr}")
        a(f"v_cndmask_b32 v{4+k}, v10, v{4+k}, vcc")
        if k == 2:
            a(f"v_cmp_gt_u32 vcc, 180, v{vq}")
            a(f"v_cndmask_b32 v{4+k}, v10, v{4+k}, vcc")
    a("v_lshlrev_b32 v11, 4, v2")
    a("v_add_u32 v12, 4096, v11")
    S_AO = 9
    S_BO = 10
    a(f"s_mul_i32 s{S_AO}, s{S_B}, 40")
    a(f"s_mul_i32 s11, s{S_W}, 10")
    a(f"s_add_u32 s{S_AO}, s{S_AO}, s11")
    a(f"s_lshl_b32 s{S_AO}, s{S_AO}, 16")
    a(f"s_lshl_b32 s{S_BO}, s{S_NB}, 2")
    a(f"s_add_u32 s{S_BO}, s{S_BO}, s{S_W}")
    a(f"s_mul_i32 s{S_BO}, s{S_BO}, {NKS*5120}")
    a("s_waitcnt lgkmcnt(0)")
    SRD_A, SRD_W = 40, 44
    srd(a, SRD_A, P_WS, ACT_BYTES, A1_OFF if which == 1 else A2_OFF)
    srd(a, SRD_W, P_WS, WP_BYTES, WP1_OFF if which == 1 else WP2_OFF)

    def dma(sp, k):
        pos = sp + 2 if sp < 8 else sp - 8
        a(f"s_add_u32 m0, s{S_LB}, {pos*SLAB + k*1024}")
        a(f"s_add_u32 s11, s{S_AO}, {sp*65536}")
        a(f"buffer_load_dwordx4 v{4+k}, s[{SRD_A}:{SRD_A+3}], s11 offen lds", vm=f"d{sp}_{k}")

    def bload(ks, n):
        if n == 0:
            a(f"s_add_u32 s12, s{S_BO}, {ks*5120}")
        if n < 4:
            a(f"buffer_load_dwordx4 {breg(ks, n)}, v11, s[{SRD_W}:{SRD_W+3}], s12 offen offset:{n*1024}", vm=f"b{ks}")
        else:
            a(f"buffer_load_dwordx4 {breg(ks, n)}, v12, s[{SRD_W}:{SRD_W+3}], s12 offen", vm=f"b{ks}")

    for k in range(3):
        for sp in range(4):
            dma(sp, k)
        if k == 0:
            for n in range(5):
                bload(0, n)
    for n in range(5):
        bload(1, n)
    for n in range(5):
        bload(2, n)
    pending = []
    for sp in range(4, 8):
        for k in range(3):
            pending.append(("dma", sp, k))
    for ks in range(3, DEPTH):
        for n in range(5):
            pending.append(("b", ks, n))
    dm = [p for p in pending if p[0] == "dma"] + [("dma", sp, k) for sp in (8, 9) for k in range(3)]
    bb = [p for p in pending if p[0] == "b"]
    pending = bb[:10] + dm[:12] + bb[10:] + dm[12:]

    a("v_and_b32 v7, 15, v2")
    a("v_lshrrev_b32 v8, 4, v2")
    a("v_lshlrev_b32 v7, 4, v7")
    a(f"v_add_u32 v7, s{S_LB}, v7")
    a(f"v_mul_u32_u24 v9, {SLAB}, v8")
    a(f"v_add3_u32 v9, v9, v7, 0")
    a(f"v_add_u32 v9, {2*SLAB}, v9")
    a("v_and_b32 v13, 1, v8")
    a(f"v_mul_u32_u24 v13, {SLAB}, v13")
    a("v_add_u32 v13, v13, v7")
    a("v_lshrrev_b32 v8, 1, v8")
    a("v_lshl_add_u32 v14, v8, 4, v13")
    a("v_mul_u32_u24 v15, 288, v8")
    a("v_add_u32 v15, v15, v13")
    for jp in range(4):
        a(f"s_add_u32 s11, s{S_W}, {jp+1}")
        a("s_and_b32 s11, s11, 3")
        a("s_mul_i32 s11, s11, 576")
        a(f"v_add_u32 v{16+jp}, s11, v9")
        a(f"v_add_u32 v{20+jp}, s11, v14")
        a(f"v_add_u32 v{24+jp}, s11, v15")
        a(f"v_add_u32 v{28+jp}, s11, v13")
    a(f"s_add_u32 s11, s{S_LB}, {XOFF}")
    a("v_add_u32 v32, s11, v11")
    for jp in range(3):
        a(f"s_add_u32 s11, s{S_W}, {3-jp}")
        a("s_and_b32 s11, s11, 3")
        a(f"s_mul_i32 s11, s11, {WREG}")
        a(f"s_add_u32 s11, s11, {XOFF + jp*10240}")
        a(f"v_add_u32 v{33+jp}, s11, v11")

    def aread(ks, slot, dst):
        jp, r = slot // 2, slot % 2
        if ks < 18:
            t = ks % 9
            off = tapoff(t) + r * 288 + (4 * SLAB if ks >= 9 else 0)
            v = 16 + jp
        else:
            ta, tb = TAIL_PAIRS[ks - 18]
            off = tapoff(ta) + r * 288
            if tb is None:
                v = 28 + jp
            elif tapoff(tb) - tapoff(ta) == 16:
                v = 20 + jp
            else:
                assert tapoff(tb) - tapoff(ta) == 288
                v = 24 + jp
        a(f"ds_read_b128 {areg(dst)}, v{v} offset:{off}", lg=f"a{ks}_{slot}")

    def mfma(ks, slot, n, ai):
        c = "0" if ks == 0 else acc(slot, n)
        if which == 1:
            a(f"v_mfma_f32_16x16x32_bf16 {acc(slot, n)}, {breg(ks, n)}, {areg(ai)}, {c}")
        else:
            a(f"v_mfma_f32_16x16x32_bf16 {acc(slot, n)}, {areg(ai)}, {breg(ks, n)}, {c}")

    def do_pending():
        if pending:
            p = pending.pop(0)
            if p[0] == "dma":
                dma(p[1], p[2])
            elif p[0] == "b":
                bload(p[1], p[2])
            else:
                p[1]()

    S_EO = 13
    if which == 1:
        SRD_E, SRD_G, SRD_BE = 48, 52, 56
        srd(a, SRD_E, P_WS, EMB_BYTES, EMB_OFF)
        srd(a, SRD_G, P_G2, 640)
        srd(a, SRD_BE, P_B2, 640)
        a("v_lshrrev_b32 v3, 4, v2")
        a(f"s_mul_i32 s11, s{S_NB}, 80")
        a("v_lshl_add_u32 v3, v3, 2, s11")
        a("v_lshlrev_b32 v7, 1, v3")
        a(f"s_mul_i32 s11, s{S_B}, 320")
        a("v_add_u32 v3, s11, v3")
        a("v_lshlrev_b32 v3, 2, v3")
        EMBR = [224, 36]
        GAM = [244 + 2 * n for n in range(5)]
        BET = [56, 58, 60, 62, 254]

        def epi_loads():
            for es in range(ES):
                for n in range(5):
                    r = EMBR[es] + 4 * n
                    a(f"buffer_load_dwordx4 v[{r}:{r+3}], v3, s[{SRD_E}:{SRD_E+3}], 0 offen offset:{es*2560 + n*64}", vm="epi")
            for n in range(5):
                a(f"buffer_load_dwordx2 v[{GAM[n]}:{GAM[n]+1}], v7, s[{SRD_G}:{SRD_G+3}], 0 offen offset:{n*32}", vm="epi")
                a(f"buffer_load_dwordx2 v[{BET[n]}:{BET[n]+1}], v7, s[{SRD_BE}:{SRD_BE+3}], 0 offen offset:{n*32}", vm="epi")
    else:
        SRD_X, SRD_O = 48, 52
        srd(a, SRD_X, P_X, X_BYTES)
        srd(a, SRD_O, P_OUT, X_BYTES)
        a("v_and_b32 v3, 15, v2")
        a("v_lshlrev_b32 v3, 13, v3")
        a("v_lshrrev_b32 v7, 4, v2")
        a("v_lshl_add_u32 v3, v7, 3, v3")
        a(f"s_mul_i32 s11, s{S_B}, 320")
        a(f"s_mul_i32 s14, s{S_NB}, 80")
        a("s_add_u32 s11, s11, s14")
        a("s_lshl_b32 s11, s11, 13")
        a(f"s_lshl_b32 s14, s{S_W}, 1")
        a(f"s_add_u32 s14, s14, s{S_Y0}")
        a("s_lshl_b32 s14, s14, 7")
        a("s_add_u32 s11, s11, s14")
        a(f"s_lshl_b32 s14, s{S_X0}, 1")
        a("s_add_u32 s11, s11, s14")
        a("v_add_u32 v3, s11, v3")
        for n in range(5):
            a(f"s_mov_b32 s{60+n}, {n*16*8192}")
        XR = 224

        def epi_loads():
            for r in range(2):
                for n in range(5):
                    d = XR + (r * 5 + n) * 2
                    a(f"buffer_load_dwordx2 v[{d}:{d+1}], v3, s[{SRD_X}:{SRD_X+3}], s{60+n} offen offset:{r*128}", vm="epi")

    a.wait(vm=[f"d{sp}_{k}" for sp in range(4) for k in range(3)])
    for slot in range(8):
        aread(0, slot, slot)
    for ks in range(18):
        a.comment(f"---- kstep {ks}")
        a.wait(vm=f"b{ks}")
        if ks == 8:
            a.wait(vm=[f"d{sp}_{k}" for sp in range(4, 8) for k in range(3)])
        if ks == 17:
            a.wait(vm=[f"d{sp}_{k}" for sp in range(8, 10) for k in range(3)])
        nb = ks + DEPTH - 1
        if ks >= 1 and nb < NKS:
            for n in range(5):
                pending.append(("b", nb, n))
        if ks == 12:
            pending.append(("f", epi_loads))
        for slot in range(8):
            a.wait(lg=f"a{ks}_{slot}")
            for n in range(5):
                mfma(ks, slot, n, slot)
                if n in (1, 3):
                    do_pending()
            if ks < 17:
                aread(ks + 1, slot, slot)
            elif slot >= 3:
                pass
    while pending:
        do_pending()
    for u in range(5):
        aread(18 + u, 0, u)
    wr_pending = []
    for slot in range(8):
        st = (slot % 2) * 5
        nst = 5 - st
        if slot == 6:
            while wr_pending:
                wr_pending.pop(0)()
            a.wait_all(vm=False, lg=True)
            a("s_barrier")
            rd_pending = []
            for jp in range(3):
                for f in range(10):
                    r = accr(2 * jp, 0) + f * 4
                    rd_pending.append((f"ds_read_b128 v[{r}:{r+3}], v{33+jp} offset:{f*1024}", f"x{jp}"))
        cnt = 0
        for u in range(5):
            ks = 18 + u
            if slot == 0:
                a.wait(vm=f"b{ks}")
            a.wait(lg=f"a{ks}_{slot}")
            for n in range(5):
                mfma(ks, slot, n, st + u)
                cnt += 1
                if n == 0 and slot < 7:
                    aread(18 + u, slot + 1, nst + u)
                elif n == 2 and cnt > 8 and wr_pending:
                    wr_pending.pop(0)()
                elif n == 4 and cnt > 8 and wr_pending:
                    wr_pending.pop(0)()
                elif slot >= 6 and n >= 1 and rd_pending:
                    s, tg = rd_pending.pop(0)
                    a(s, lg=tg)
        if slot < 6:
            for n in range(5):
                def w(slot=slot, n=n):
                    a(f"ds_write_b128 v32, {acc(slot, n)} offset:{(slot*5+n)*1024}", lg="xw")
                wr_pending.append(w)
    while rd_pending:
        s, tg = rd_pending.pop(0)
        a(s, lg=tg)
    own = accr(6, 0)
    a.wait(lg=["x0", "x1"])
    for i in range(0, 40, 2):
        r0, r1 = accr(0, 0) + i, accr(2, 0) + i
        a(f"v_pk_add_f32 v[{r0}:{r0+1}], v[{r0}:{r0+1}], v[{r1}:{r1+1}]")
    a.wait(lg="x2")
    for i in range(0, 40, 2):
        r2 = accr(4, 0) + i
        a(f"v_pk_add_f32 v[{own+i}:{own+i+1}], v[{own+i}:{own+i+1}], v[{r2}:{r2+1}]")
    for i in range(0, 40, 2):
        r0 = accr(0, 0) + i
        a(f"v_pk_add_f32 v[{own+i}:{own+i+1}], v[{own+i}:{own+i+1}], v[{r0}:{r0+1}]")
    a.wait(vm="epi")

    if which == 1:
        for n in range(5):
            for i in range(0, 4, 2):
                e0, e1 = EMBR[0] + 4 * n + i, EMBR[1] + 4 * n + i
                a(f"v_pk_add_f32 v[{e0}:{e0+1}], v[{e0}:{e0+1}], v[{e1}:{e1+1}]")
        for r in range(2):
            for n in range(5):
                for i in range(0, 4, 2):
                    h = accr(6 + r, n) + i
                    e0 = EMBR[0] + 4 * n + i
                    a(f"v_pk_add_f32 v[{h}:{h+1}], v[{h}:{h+1}], v[{e0}:{e0+1}]")
        a("v_mov_b32 v8, 0")
        a("v_mov_b32 v9, 0")
        a("v_mov_b32 v10, 0")
        a("v_mov_b32 v11, 0")
        for i in range(0, 40, 2):
            h = own + i
            a(f"v_pk_add_f32 v[8:9], v[8:9], v[{h}:{h+1}]")
            a(f"v_pk_fma_f32 v[10:11], v[{h}:{h+1}], v[{h}:{h+1}], v[10:11]")
        a("v_add_f32 v8, v8, v9")
        a("v_add_f32 v9, v10, v11")
        wave_reduce2(a, 8, 9)
        ST = WREG - 256
        a(f"s_lshl_b32 s11, s{S_W}, 3")
        a(f"s_add_u32 s11, s11, {ST}")
        a("v_mov_b32 v10, s11")
        a("s_mov_b32 exec_lo, 0")
        a("s_mov_b32 exec_hi, 0x80000000")
        a("ds_write_b64 v10, v[8:9]")
        a("s_mov_b64 exec, -1")
        a("s_waitcnt lgkmcnt(0)")
        a("s_barrier")
        a(f"s_cmp_lg_u32 s{S_W}, 0")
        a(f"s_cbranch_scc1 {pfx}_wait")
        a("v_mov_b32 v8, 0")
        a("v_mov_b32 v9, 0")
        a("v_lshlrev_b32 v10, 3, v2")
        a("s_mov_b64 exec, 0xf")
        a(f"ds_read_b64 v[8:9], v10 offset:{ST}")
        a("s_mov_b64 exec, -1")
        a("s_waitcnt lgkmcnt(0)")
        wave_reduce2(a, 8, 9, full=False)
        a(f"s_lshl_b32 s14, s{S_B}, 2")
        a(f"s_add_u32 s14, s14, s{S_NB}")
        group_barrier_stats(a, pfx, 8, 9, 16, 14, 32, 60, ST + 128)
        a.label(f"{pfx}_wait")
        a("s_barrier")
        a(f"v_mov_b32 v10, {ST+128}")
        a("ds_read_b64 v[8:9], v10")
        SRD_O = 48
        srd(a, SRD_O, P_WS, ACT_BYTES, A2_OFF)
        a("v_lshrrev_b32 v3, 5, v2")
        a("v_lshlrev_b32 v3, 16, v3")
        a("v_and_b32 v7, 15, v2")
        a("v_lshl_add_u32 v3, v7, 4, v3")
        a("v_bfe_u32 v7, v2, 4, 1")
        a("v_lshl_add_u32 v3, v7, 3, v3")
        a(f"s_mul_i32 s11, s{S_B}, 40")
        a(f"s_mul_i32 s14, s{S_NB}, 10")
        a("s_add_u32 s11, s11, s14")
        a("s_lshl_b32 s11, s11, 16")
        a(f"s_lshl_b32 s14, s{S_W}, 1")
        a(f"s_add_u32 s14, s14, s{S_Y0}")
        a("s_lshl_b32 s14, s14, 10")
        a("s_add_u32 s11, s11, s14")
        a(f"s_lshl_b32 s14, s{S_X0}, 4")
        a("s_add_u32 s11, s11, s14")
        a("v_add_u32 v3, s11, v3")
        for n in range(5):
            a(f"s_mov_b32 s{60+n}, {n*2*65536}")
        a("s_waitcnt lgkmcnt(0)")
        SC, SH, SC2, SH2 = 64, 84, 104, 124
        for n in range(5):
            for i in range(4):
                k = 4 * n + i
                g, b = GAM[n] + i // 2, BET[n] + i // 2
                if i % 2 == 0:
                    a(f"v_lshlrev_b32 v{SC+k}, 16, v{g}")
                    a(f"v_lshlrev_b32 v{SH+k}, 16, v{b}")
                else:
                    a(f"v_and_b32 v{SC+k}, 0xffff0000, v{g}")
                    a(f"v_and_b32 v{SH+k}, 0xffff0000, v{b}")
                a(f"v_mul_f32 v{SC+k}, v{SC+k}, v9")
                a(f"v_fma_f32 v{SH+k}, -v8, v{SC+k}, v{SH+k}")
                a(f"v_mul_f32 v{SC2+k}, {f32(-LOG2E)}, v{SC+k}")
                a(f"v_mul_f32 v{SH2+k}, {f32(-LOG2E)}, v{SH+k}")
        for r in range(2):
            for n in range(5):
                h = accr(6 + r, n)
                t = 144 + 4 * ((r * 5 + n) % 4)
                for i in (0, 2):
                    k = 4 * n + i
                    a(f"v_pk_fma_f32 v[{t+i}:{t+i+1}], v[{h+i}:{h+i+1}], v[{SC2+k}:{SC2+k+1}], v[{SH2+k}:{SH2+k+1}]")
                    a(f"v_pk_fma_f32 v[{h+i}:{h+i+1}], v[{h+i}:{h+i+1}], v[{SC+k}:{SC+k+1}], v[{SH+k}:{SH+k+1}]")
                for i in range(4):
                    a(f"v_exp_f32 v{t+i}, v{t+i}")
                for i in (0, 2):
                    a(f"v_pk_add_f32 v[{t+i}:{t+i+1}], v[{t+i}:{t+i+1}], 1.0 op_sel_hi:[1,0]")
                for i in range(4):
                    a(f"v_rcp_f32 v{t+i}, v{t+i}")
                for i in (0, 2):
                    a(f"v_pk_mul_f32 v[{h+i}:{h+i+1}], v[{h+i}:{h+i+1}], v[{t+i}:{t+i+1}]")
                a(f"v_cvt_pk_bf16_f32 v{h}, v{h}, v{h+1}")
                a(f"v_cvt_pk_bf16_f32 v{h+1}, v{h+2}, v{h+3}")
                a(f"buffer_store_dwordx2 v[{h}:{h+1}], v3, s[{SRD_O}:{SRD_O+3}], s{60+n} offen offset:{r*1024}")
    else:
        for r in range(2):
            for n in range(5):
                h = accr(6 + r, n)
                d = XR + (r * 5 + n) * 2
                t = 64 + 4 * ((r * 5 + n) % 4)
                a(f"v_lshlrev_b32 v{t}, 16, v{d}")
                a(f"v_and_b32 v{t+1}, 0xffff0000, v{d}")
                a(f"v_lshlrev_b32 v{t+2}, 16, v{d+1}")
                a(f"v_and_b32 v{t+3}, 0xffff0000, v{d+1}")
                a(f"v_pk_add_f32 v[{h}:{h+1}], v[{h}:{h+1}], v[{t}:{t+1}]")
                a(f"v_pk_add_f32 v[{h+2}:{h+3}], v[{h+2}:{h+3}], v[{t+2}:{t+3}]")
                a(f"v_cvt_pk_bf16_f32 v{h}, v{h}, v{h+1}")
                a(f"v_cvt_pk_bf16_f32 v{h+1}, v{h+2}, v{h+3}")
                a(f"buffer_store_dwordx2 v[{h}:{h+1}], v3, s[{SRD_O}:{SRD_O+3}], s{60+n} offen offset:{r*128}")
    a.label(f"{pfx}_end")
    a("s_endpgm")
    return a


HEADER = """; ADM resblock (GN+SiLU+conv3x3 x2 + emb + residual) for gfx950; generated by dev/gen.py
; @launch kernel=prep_kernel grid=({k1grid},1,1) block=(640,1,1) lds=10240
; @launch kernel=conv1_kernel grid=(256,1,1) block=(256,1,1) lds=163840
; @launch kernel=conv2_kernel grid=(256,1,1) block=(256,1,1) lds=163840
.amdgcn_target "amdgcn-amd-amdhsa--gfx950"
.text
"""

KD = """.amdhsa_kernel {name}
  .amdhsa_next_free_vgpr {vgpr}
  .amdhsa_next_free_sgpr 96
  .amdhsa_accum_offset {accum}
  .amdhsa_group_segment_fixed_size 0
  .amdhsa_kernarg_size 96
  .amdhsa_user_sgpr_count 2
  .amdhsa_user_sgpr_kernarg_segment_ptr 1
  .amdhsa_system_sgpr_workgroup_id_x 1
.end_amdhsa_kernel
"""


def main():
    out = HEADER.format(k1grid=K1_GRID)
    kernels = [("prep_kernel", gen_prep(), 64, 64),
               ("conv1_kernel", gen_conv(1), 456, 256),
               ("conv2_kernel", gen_conv(2), 456, 256)]
    for name, a, _, _ in kernels:
        out += f".globl {name}\n.p2align 8\n.type {name},@function\n"
        out += a.finalize()
        print(name, "nops inserted:", len(a.inserted), file=sys.stderr)
        if "-v" in sys.argv:
            for n, l in a.inserted:
                print("   ", n, l, file=sys.stderr)
    out += '.section .rodata,"a"\n'
    for name, _, vgpr, accum in kernels:
        out += ".p2align 6\n" + KD.format(name=name, vgpr=vgpr, accum=accum)
    path = sys.argv[1] if len(sys.argv) > 1 and not sys.argv[1].startswith("-") else \
        "standalone__adm_resblock__diffusion.s"
    open(path, "w").write(out)


if __name__ == "__main__":
    main()
```

```python
import sys
import struct
from asmlib import Asm

WP_BYTES = 4 * 4 * 23 * 5 * 1024
WP1_OFF = 0
WP2_OFF = 0x200000
ACT_BYTES = 2 * 40 * 4096 * 16
A1_OFF = 0x400000
A2_OFF = 0xA00000
EMB_OFF = 0x1000000
ES = 2
EMB_BYTES = ES * 640 * 4
X_BYTES = 2 * 320 * 4096 * 2
W_BYTES = 320 * 320 * 9 * 2
OOB = 0x7FFF0000

N_X_WG = 256
N_W_WG = 160
N_E_WG = 10 * ES
K1_GRID = N_X_WG + N_W_WG + N_E_WG

TAIL_PAIRS = [(2, 5), (8, None), (0, 1), (3, 4), (6, 7)]
LOG2E = 1.4426950408889634
NGRP = 80 * 4096


def f32(x):
    return "0x%08x" % struct.unpack("<I", struct.pack("<f", x))[0]


def srd(a, d, base, nbytes, off=0):
    if off:
        a(f"s_add_u32 s{d}, s{base}, {hex(off)}")
        a(f"s_addc_u32 s{d+1}, s{base+1}, 0")
    else:
        a(f"s_mov_b32 s{d}, s{base}")
        a(f"s_mov_b32 s{d+1}, s{base+1}")
    a(f"s_mov_b32 s{d+2}, {hex(nbytes)}")
    a(f"s_mov_b32 s{d+3}, 0x00020000")


P_X, P_T, P_G1, P_B1, P_W1, P_WE, P_G2, P_B2, P_W2, P_OUT, P_DBG, P_WS = [16 + 2 * i for i in range(12)]


STAMP = "--stamp" in sys.argv
STAMP_OFF = 0x2000000
_stamp_n = {}


def stamp(a, real=False):
    if not STAMP:
        return
    i = _stamp_n.get(id(a), 0)
    _stamp_n[id(a)] = i + 1
    assert i < 14
    a(f"{'s_memrealtime' if real else 's_memtime'} s[{68+2*i}:{69+2*i}]")


def stamp_reset(a, n):
    _stamp_n[id(a)] = n


def stamp_flush(a, kidx, s_wave, vtmp):
    if not STAMP:
        return
    n = _stamp_n.get(id(a), 0)
    a("s_mov_b64 exec, -1")
    a("s_waitcnt vmcnt(0) lgkmcnt(0)")
    a(f"v_mov_b32 v{vtmp}, 0")
    for i in range(n):
        a(f"v_writelane_b32 v{vtmp}, s{68+2*i}, {i}")
    srd(a, 64, P_WS, 0x100000, STAMP_OFF + kidx * 0x100000)
    a(f"v_mbcnt_lo_u32_b32 v{vtmp+1}, -1, 0")
    a(f"v_lshlrev_b32 v{vtmp+1}, 2, v{vtmp+1}")
    a("s_lshl_b32 s68, s2, 4")
    a(f"s_add_u32 s68, s68, s{s_wave}")
    a("s_lshl_b32 s68, s68, 6")
    a("s_mov_b64 exec, 0xffff")
    a(f"buffer_store_dword v{vtmp}, v{vtmp+1}, s[64:67], s68 offen")


def load_kernargs(a):
    a("s_load_dwordx16 s[16:31], s[0:1], 0")
    a("s_load_dwordx8 s[32:39], s[0:1], 64")


def wave_reduce2(a, v1, v2, full=True):
    steps = ["row_shr:1 row_mask:0xf bank_mask:0xf bound_ctrl:0",
             "row_shr:2 row_mask:0xf bank_mask:0xf bound_ctrl:0",
             "row_shr:4 row_mask:0xf bank_mask:0xf bound_ctrl:0",
             "row_shr:8 row_mask:0xf bank_mask:0xf bound_ctrl:0"]
    if full:
        steps += ["row_bcast:15 row_mask:0xa bank_mask:0xf",
                  "row_bcast:31 row_mask:0xc bank_mask:0xf"]
    for st in steps:
        a(f"v_add_f32_dpp v{v1}, v{v1}, v{v1} {st}")
        a(f"v_add_f32_dpp v{v2}, v{v2}, v{v2} {st}")


SLOT_OFF = 0x1100000
TAG_A, TAG_B = 0x9E3779B1, 0x7F4A7C15


def epoch_load(a, kidx, s_grp, srd_reg, vE, vtmp, s_tmp):
    a(f"s_lshl_b32 s{s_tmp}, s{s_grp}, 12")
    a(f"s_add_u32 s{s_tmp}, s{s_tmp}, {hex(SLOT_OFF + kidx * 0x8000)}")
    a(f"s_add_u32 s{srd_reg}, s{P_WS}, s{s_tmp}")
    a(f"s_addc_u32 s{srd_reg+1}, s{P_WS+1}, 0")
    a(f"s_mov_b32 s{srd_reg+2}, 4096")
    a(f"s_mov_b32 s{srd_reg+3}, 0x00020000")
    a(f"v_mov_b32 v{vtmp}, 0")
    a(f"buffer_load_dwordx2 v[{vE}:{vE+1}], v{vtmp}, s[{srd_reg}:{srd_reg+3}], 0 offen offset:1024 sc1", vm="epoch")


def group_barrier_stats(a, pfx, vS1, vS2, vT, srd_reg, vE, s_idx, s_tmp, lds_out):
    R = f"s[{srd_reg}:{srd_reg+3}]"
    a(f"v_readlane_b32 s{s_tmp}, v{vS1}, 15")
    a(f"v_readlane_b32 s{s_tmp+1}, v{vS2}, 15")
    a(f"v_add_u32 v{vT+5}, {hex(TAG_A)}, v{vE}")
    a(f"v_add_u32 v{vT+7}, {hex(TAG_B)}, v{vE+1}")
    a(f"v_mov_b32 v{vT+4}, s{s_tmp}")
    a(f"v_mov_b32 v{vT+6}, s{s_tmp+1}")
    a(f"s_lshl_b32 s{s_tmp+2}, s{s_idx}, 4")
    a(f"v_mov_b32 v{vT+8}, s{s_tmp+2}")
    a(f"v_mbcnt_lo_u32_b32 v{vT+9}, -1, 0")
    a(f"v_lshlrev_b32 v{vT+9}, 4, v{vT+9}")
    a("s_mov_b64 exec, 1")
    a(f"buffer_store_dwordx4 v[{vT+4}:{vT+7}], v{vT+8}, {R}, 0 offen sc1")
    a("s_mov_b32 exec_lo, -1")
    a("s_mov_b32 exec_hi, 0")
    a(f"s_mov_b32 s{s_tmp+3}, 0")
    a.label(f"{pfx}_poll")
    a(f"buffer_load_dwordx4 v[{vT}:{vT+3}], v{vT+9}, {R}, 0 offen sc1")
    a(f"s_add_u32 s{s_tmp+3}, s{s_tmp+3}, 1")
    a("s_waitcnt vmcnt(0)")
    a(f"v_cmp_eq_u32 vcc, v{vT+1}, v{vT+5}")
    a(f"v_cmp_eq_u32 s[{s_tmp}:{s_tmp+1}], v{vT+3}, v{vT+7}")
    a(f"s_and_b32 s{s_tmp}, s{s_tmp}, vcc_lo")
    a(f"s_cmp_eq_u32 s{s_tmp}, -1")
    a(f"s_cbranch_scc1 {pfx}_polldone")
    a(f"s_cmp_ge_u32 s{s_tmp+3}, 0x40000")
    a(f"s_cbranch_scc1 {pfx}_polldone")
    a("s_sleep 2")
    a(f"s_branch {pfx}_poll")
    a.label(f"{pfx}_polldone")
    a(f"s_cmp_lg_u32 s{s_idx}, 0")
    a(f"s_cbranch_scc1 {pfx}_noepoch")
    a(f"v_mov_b32 v{vT+6}, v{vT+5}")
    a("s_mov_b64 exec, 1")
    a(f"buffer_store_dwordx2 v[{vT+6}:{vT+7}], v{vT+9}, {R}, 0 offen offset:1024")
    a.label(f"{pfx}_noepoch")
    a("s_mov_b64 exec, -1")
    for st in ["row_shr:1 row_mask:0xf bank_mask:0xf bound_ctrl:0",
               "row_shr:2 row_mask:0xf bank_mask:0xf bound_ctrl:0",
               "row_shr:4 row_mask:0xf bank_mask:0xf bound_ctrl:0",
               "row_shr:8 row_mask:0xf bank_mask:0xf bound_ctrl:0",
               "row_bcast:15 row_mask:0xa bank_mask:0xf"]:
        a(f"v_add_f32_dpp v{vT}, v{vT}, v{vT} {st}")
        a(f"v_add_f32_dpp v{vT+2}, v{vT+2}, v{vT+2} {st}")
    a(f"v_mul_f32 v{vT}, {f32(1.0 / NGRP)}, v{vT}")
    a(f"v_mul_f32 v{vT+1}, {f32(1.0 / NGRP)}, v{vT+2}")
    a(f"v_fma_f32 v{vT+1}, -v{vT}, v{vT}, v{vT+1}")
    a(f"v_max_f32 v{vT+1}, 0, v{vT+1}")
    a(f"v_add_f32 v{vT+1}, {f32(1e-5)}, v{vT+1}")
    a(f"v_rsq_f32 v{vT+1}, v{vT+1}")
    a(f"v_mov_b32 v{vT+8}, {lds_out}")
    a("s_mov_b32 exec_lo, 0x80000000")
    a("s_mov_b32 exec_hi, 0")
    a(f"ds_write_b64 v{vT+8}, v[{vT}:{vT+1}]")
    a("s_mov_b64 exec, -1")
    a("s_waitcnt lgkmcnt(0)")


def gen_prep():
    a = Asm()
    a.label("prep_kernel")
    stamp(a, True)
    stamp(a)
    load_kernargs(a)
    a("v_lshrrev_b32 v1, 6, v0")
    a("v_and_b32 v2, 63, v0")
    a("v_readfirstlane_b32 s3, v1")
    a(f"s_cmp_lt_u32 s2, {N_X_WG}")
    a("s_cbranch_scc1 prep_x")
    a(f"s_cmp_lt_u32 s2, {N_X_WG + N_W_WG}")
    a("s_cbranch_scc1 prep_w")
    a(f"s_cmp_lt_u32 s2, {K1_GRID}")
    a("s_cbranch_scc1 prep_e")
    a("s_endpgm")

    a.label("prep_x")
    a("s_lshr_b32 s4, s2, 5")
    a("s_and_b32 s6, s2, 31")
    a("s_mul_i32 s7, s4, 10")
    a("s_add_u32 s7, s7, s3")
    a("s_and_b32 s5, s4, 3")
    a("s_mul_i32 s5, s5, 10")
    a("s_add_u32 s5, s5, s3")
    a("s_lshl_b32 s5, s5, 4")
    a("s_lshl_b32 s9, s7, 16")
    a("s_lshl_b32 s10, s6, 8")
    a("s_add_u32 s44, s9, s10")
    for j in range(1, 8):
        a(f"s_add_u32 s{44+j}, s44, {j*8192}")
    a("s_lshl_b32 s10, s6, 11")
    a("s_add_u32 s60, s9, s10")
    a("v_lshlrev_b32 v3, 2, v2")
    a("v_lshlrev_b32 v4, 5, v2")
    a("s_waitcnt lgkmcnt(0)")
    srd(a, 40, P_X, X_BYTES)
    a(f"s_load_dwordx4 s[52:55], s[{P_G1}:{P_G1+1}], s5")
    a(f"s_load_dwordx4 s[56:59], s[{P_B1}:{P_B1+1}], s5")
    for j in range(8):
        a(f"buffer_load_dword v{8+j}, v3, s[40:43], s{44+j} offen", vm=f"x{j}")
    srd(a, 12, P_WS, ACT_BYTES, A1_OFF)
    epoch_load(a, 0, 4, 96, 62, 61, 8)
    a("v_mov_b32 v5, 0x3f803f80")
    a("v_mov_b32 v6, 0")
    a("v_mov_b32 v7, 0")
    for j in range(8):
        a.wait(vm=f"x{j}")
        a(f"v_dot2_f32_bf16 v6, v{8+j}, v5, v6")
        a(f"v_dot2_f32_bf16 v7, v{8+j}, v{8+j}, v7")
        a(f"v_lshlrev_b32 v{16+2*j}, 16, v{8+j}")
        a(f"v_and_b32 v{17+2*j}, 0xffff0000, v{8+j}")
    stamp(a)
    wave_reduce2(a, 6, 7)
    a("s_lshl_b32 s8, s3, 3")
    a("v_mov_b32 v5, s8")
    a("s_mov_b32 exec_lo, 0")
    a("s_mov_b32 exec_hi, 0x80000000")
    a("ds_write_b64 v5, v[6:7]")
    a("s_mov_b64 exec, -1")
    a.wait(vm="epoch")
    a("s_waitcnt lgkmcnt(0)")
    a("s_barrier")
    stamp(a)
    a("s_cmp_lg_u32 s3, 0")
    a("s_cbranch_scc1 prep_x_wait")
    a("v_mov_b32 v6, 0")
    a("v_mov_b32 v7, 0")
    a("v_lshlrev_b32 v5, 3, v2")
    a("s_mov_b64 exec, 0x3ff")
    a("ds_read_b64 v[6:7], v5")
    a("s_mov_b64 exec, -1")
    a("s_waitcnt lgkmcnt(0)")
    wave_reduce2(a, 6, 7, full=False)
    group_barrier_stats(a, "prep", 6, 7, 32, 96, 62, 6, 8, 128)
    a.label("prep_x_wait")
    a("s_barrier")
    stamp(a)
    a("v_mov_b32 v5, 128")
    a("ds_read_b64 v[6:7], v5")
    for j in range(8):
        sg, sb = 52 + j // 2, 56 + j // 2
        if j % 2 == 0:
            a(f"s_lshl_b32 s{44+j}, s{sg}, 16")
            a(f"s_lshl_b32 s61, s{sb}, 16")
        else:
            a(f"s_and_b32 s{44+j}, s{sg}, 0xffff0000")
            a(f"s_and_b32 s61, s{sb}, 0xffff0000")
        a(f"v_mov_b32 v{32+4*j+1}, s61")
    a("s_waitcnt lgkmcnt(0)")
    for j in range(8):
        r = 32 + 4 * j
        a(f"v_mul_f32 v{r}, s{44+j}, v7")
        a(f"v_fma_f32 v{r+1}, -v6, v{r}, v{r+1}")
        a(f"v_mul_f32 v{r+2}, {f32(-LOG2E)}, v{r}")
        a(f"v_mul_f32 v{r+3}, {f32(-LOG2E)}, v{r+1}")
    for j in range(8):
        r = 32 + 4 * j
        x = 16 + 2 * j
        t = 8 + 2 * (j % 4)
        a(f"v_pk_fma_f32 v[{t}:{t+1}], v[{x}:{x+1}], v[{r+2}:{r+3}], v[{r+2}:{r+3}] op_sel:[0,0,1] op_sel_hi:[1,0,1]")
        a(f"v_pk_fma_f32 v[{x}:{x+1}], v[{x}:{x+1}], v[{r}:{r+1}], v[{r}:{r+1}] op_sel:[0,0,1] op_sel_hi:[1,0,1]")
        a(f"v_exp_f32 v{t}, v{t}")
        a(f"v_exp_f32 v{t+1}, v{t+1}")
        a(f"v_pk_add_f32 v[{t}:{t+1}], v[{t}:{t+1}], 1.0 op_sel_hi:[1,0]")
        a(f"v_rcp_f32 v{t}, v{t}")
        a(f"v_rcp_f32 v{t+1}, v{t+1}")
        a(f"v_pk_mul_f32 v[{x}:{x+1}], v[{x}:{x+1}], v[{t}:{t+1}]")
    for q in range(4):
        a(f"v_cvt_pk_bf16_f32 v{32+q}, v{16+4*q}, v{18+4*q}")
        a(f"v_cvt_pk_bf16_f32 v{36+q}, v{17+4*q}, v{19+4*q}")
    a("buffer_store_dwordx4 v[32:35], v4, s[12:15], s60 offen")
    a("buffer_store_dwordx4 v[36:39], v4, s[12:15], s60 offen offset:16")
    stamp(a)
    if STAMP:
        a("s_waitcnt vmcnt(0)")
    stamp(a)
    stamp(a, True)
    stamp_flush(a, 0, 3, 40)
    a("s_endpgm")

    a.label("prep_w")
    a(f"s_sub_u32 s4, s2, {N_X_WG}")
    a("s_and_b32 s9, s4, 3")
    a("s_lshr_b32 s4, s4, 2")
    a("s_cmp_ge_u32 s4, 20")
    a("s_cselect_b32 s5, 1, 0")
    a("s_mul_i32 s6, s5, 20")
    a("s_sub_u32 s4, s4, s6")
    a("s_mul_i32 s6, s4, 52429")
    a("s_lshr_b32 s6, s6, 18")
    a("s_mul_i32 s7, s6, 5")
    a("s_sub_u32 s7, s4, s7")
    a("s_mul_i32 s10, s4, 92160")
    a("s_mul_i32 s11, s9, 1440")
    a("s_add_u32 s10, s10, s11")
    a(f"v_mov_b32 v10, {hex(OOB)}")
    for k in range(3):
        a(f"v_add_u32 v3, {640*k}, v0")
        a("v_mul_u32_u24 v4, 46092, v3")
        a("v_lshrrev_b32 v4, 22, v4")
        a("v_mul_u32_u24 v5, 91, v4")
        a("v_sub_u32 v5, v3, v5")
        a("v_mul_u32_u24 v4, 5760, v4")
        a(f"v_lshl_add_u32 v{6+k}, v5, 4, v4")
        a("v_cmp_gt_u32 vcc, 90, v5")
        a(f"v_cndmask_b32 v{6+k}, v10, v{6+k}, vcc")
        if k == 2:
            a("v_cmp_gt_u32 vcc, 1456, v3")
            a(f"v_cndmask_b32 v{6+k}, v10, v{6+k}, vcc")
    a("s_waitcnt lgkmcnt(0)")
    a("s_cmp_eq_u32 s5, 0")
    a(f"s_cselect_b32 s40, s{P_W1}, s{P_W2}")
    a(f"s_cselect_b32 s41, s{P_W1+1}, s{P_W2+1}")
    a(f"s_mov_b32 s42, {hex(W_BYTES)}")
    a("s_mov_b32 s43, 0x00020000")
    a(f"s_cselect_b32 s12, {hex(WP1_OFF)}, {hex(WP2_OFF)}")
    a("s_lshl_b32 s13, s3, 10")
    a("s_mov_b32 m0, s13")
    a(f"s_add_u32 s44, s{P_WS}, s12")
    a(f"s_addc_u32 s45, s{P_WS+1}, 0")
    a("buffer_load_dwordx4 v6, s[40:43], s10 offen lds")
    a("s_add_u32 m0, s13, 10240")
    a("buffer_load_dwordx4 v7, s[40:43], s10 offen lds")
    a("s_cmp_ge_u32 s3, 3")
    a("s_cbranch_scc1 prep_w_sync")
    a("s_add_u32 m0, s13, 20480")
    a(f"s_mov_b32 s46, {hex(WP_BYTES)}")
    a("buffer_load_dwordx4 v8, s[40:43], s10 offen lds")
    a.label("prep_w_sync")
    a("s_waitcnt vmcnt(0)")
    a("s_barrier")
    a("s_cmp_ge_u32 s3, 3")
    a("s_cbranch_scc1 prep_w_end")
    a(f"s_mov_b32 s46, {hex(WP_BYTES)}")
    a("s_mov_b32 s47, 0x00020000")
    a("v_and_b32 v3, 15, v0")
    a("v_lshrrev_b32 v7, 4, v0")
    a("v_mul_u32_u24 v5, 1456, v3")
    a("v_mul_u32_u24 v6, 144, v7")
    a("v_add_u32 v5, v5, v6")
    for k in range(9):
        a(f"ds_read_b128 v[{16+4*k}:{19+4*k}], v5 offset:{16*k}")
    a("s_lshl_b32 s11, s6, 2")
    a("s_add_u32 s11, s11, s9")
    a("s_mul_i32 s11, s11, 115")
    a("s_add_u32 s11, s11, s7")
    a("s_lshl_b32 s11, s11, 10")
    a("v_lshlrev_b32 v8, 4, v3")
    a("v_add_u32 v8, s11, v8")
    a("v_lshrrev_b32 v9, 2, v7")
    a("v_mul_u32_u24 v9, 46080, v9")
    a("v_and_b32 v11, 3, v7")
    a("v_lshl_add_u32 v9, v11, 8, v9")
    a("v_add_u32 v8, v8, v9")
    a("v_cmp_gt_u32 vcc, 10, v7")
    a("v_cndmask_b32 v8, v10, v8, vcc")
    a("v_cmp_le_u32 vcc, 8, v7")
    a("v_cndmask_b32 v11, 0, 1, vcc")
    a("s_mov_b32 s12, 0x07060100")
    a("s_mov_b32 s13, 0x05040302")
    pair = {}
    for u, (ta, tb) in enumerate(TAIL_PAIRS):
        pair[ta] = (u, 0)
        if tb is not None:
            pair[tb] = (u, 1)
        else:
            zero_u = u
    a("s_waitcnt lgkmcnt(0)")
    for t in range(9):
        o = 52 + 4 * (t % 2)
        for q in range(4):
            X = 16 + 9 * q + t // 2
            Y = 16 + 9 * q + (9 + t) // 2
            a(f"v_perm_b32 v{o+q}, v{Y}, v{X}, s{12 + (t % 2)}")
        offa = t * 5120
        offb = pair[t][0] * 5120 + pair[t][1] * 512
        va = 12 + (t % 2)
        a(f"s_mov_b32 s14, {offb - offa}")
        a(f"v_mad_i32_i24 v{va}, v11, s14, v8")
        a(f"s_mov_b32 s15, {offa}")
        a(f"buffer_store_dwordx4 v[{o}:{o+3}], v{va}, s[44:47], s15 offen")
    for q in range(4):
        a(f"v_mov_b32 v{60+q}, 0")
    a("v_cndmask_b32 v14, v10, v8, vcc")
    a(f"s_mov_b32 s15, {zero_u*5120+512}")
    a("buffer_store_dwordx4 v[60:63], v14, s[44:47], s15 offen")
    stamp_reset(a, 2)
    stamp(a)
    if STAMP:
        a("s_waitcnt vmcnt(0)")
    stamp(a)
    stamp(a, True)
    stamp_flush(a, 0, 3, 40)
    a.label("prep_w_end")
    a("s_endpgm")

    a.label("prep_e")
    NP = 1152 // ES // 144
    a(f"s_sub_u32 s4, s2, {N_X_WG + N_W_WG}")
    a("s_mul_i32 s5, s4, 6554")
    a("s_lshr_b32 s5, s5, 16")
    a("s_mul_i32 s6, s5, 10")
    a("s_sub_u32 s4, s4, s6")
    a("s_cmp_eq_u32 s3, 9")
    a("s_cbranch_scc1 prep_e_sync")
    a("v_lshrrev_b32 v3, 2, v0")
    a("v_and_b32 v4, 3, v0")
    a(f"s_mul_i32 s7, s5, {1152 // ES}")
    a("v_add_u32 v3, s7, v3")
    a("v_mul_u32_u24 v5, 640, v3")
    a("v_lshl_add_u32 v5, v4, 4, v5")
    a("s_lshl_b32 s8, s4, 6")
    a("v_add_u32 v5, s8, v5")
    a("v_lshlrev_b32 v6, 1, v3")
    a("s_waitcnt lgkmcnt(0)")
    srd(a, 40, P_WE, 1152 * 320 * 2)
    srd(a, 44, P_T, 2 * 1152 * 2)
    for p in range(NP):
        a(f"s_mov_b32 s{48+p}, {p*144*640}")
    for p in range(NP):
        a(f"buffer_load_ushort v{8+2*p}, v6, s[44:47], 0 offen offset:{p*288}")
        a(f"buffer_load_ushort v{9+2*p}, v6, s[44:47], 0 offen offset:{p*288+2304}")
    for p in range(NP):
        a(f"buffer_load_dwordx4 v[{16+4*p}:{19+4*p}], v5, s[40:43], s{48+p} offen")
    for k in range(16):
        a(f"v_mov_b32 v{32+k}, 0")
    a(f"s_waitcnt vmcnt({NP})")
    for k in range(2 * NP):
        r = 8 + k
        a(f"v_lshlrev_b32 v{r}, 16, v{r}")
        a(f"v_mul_f32 v7, {f32(-LOG2E)}, v{r}")
        a("v_exp_f32 v7, v7")
        a("v_add_f32 v7, 1.0, v7")
        a("v_rcp_f32 v7, v7")
        a(f"v_mul_f32 v{r}, v{r}, v7")
        a(f"v_cvt_pk_bf16_f32 v{r}, v{r}, v{r}")
        a(f"v_lshlrev_b32 v{r}, 16, v{r}")
    a("s_waitcnt vmcnt(0)")
    for p in range(NP):
        for q in range(4):
            w = 16 + 4 * p + q
            a(f"v_lshlrev_b32 v48, 16, v{w}")
            a(f"v_and_b32 v49, 0xffff0000, v{w}")
            for b in range(2):
                a(f"v_fmac_f32 v{32+8*b+2*q}, v{8+2*p+b}, v48")
                a(f"v_fmac_f32 v{33+8*b+2*q}, v{8+2*p+b}, v49")
    for st in ("row_ror:4", "row_ror:8"):
        for k in range(16):
            a(f"v_add_f32_dpp v{32+k}, v{32+k}, v{32+k} {st} row_mask:0xf bank_mask:0xf")
    a("v_lshrrev_b32 v5, 4, v0")
    a("v_lshlrev_b32 v5, 8, v5")
    a("v_lshl_add_u32 v5, v4, 6, v5")
    a("s_mov_b32 exec_lo, 0x000f000f")
    a("s_mov_b32 exec_hi, 0x000f000f")
    for k in range(4):
        a(f"ds_write_b128 v5, v[{32+4*k}:{35+4*k}] offset:{16*k}")
    a("s_mov_b64 exec, -1")
    a("s_waitcnt lgkmcnt(0)")
    a.label("prep_e_sync")
    a("s_barrier")
    a("s_cmp_lg_u32 s3, 0")
    a("s_cbranch_scc1 prep_e_end")
    a("v_lshlrev_b32 v5, 2, v2")
    for rr in range(36):
        a(f"ds_read_b32 v{8+rr}, v5 offset:{rr*256}")
    a("s_waitcnt lgkmcnt(0)")
    for rr in range(1, 36):
        a(f"v_add_f32 v8, v8, v{8+rr}")
    a("v_lshrrev_b32 v3, 4, v2")
    a("v_bfe_u32 v4, v2, 3, 1")
    a("v_and_b32 v6, 7, v2")
    a("v_mul_u32_u24 v4, 320, v4")
    a("v_lshl_add_u32 v4, v3, 3, v4")
    a("v_add_u32 v4, v4, v6")
    a("s_mul_i32 s7, s5, 640")
    a("s_lshl_b32 s8, s4, 5")
    a("s_add_u32 s7, s7, s8")
    a("v_add_u32 v4, s7, v4")
    a("v_lshlrev_b32 v4, 2, v4")
    srd(a, 40, P_WS, EMB_BYTES, EMB_OFF)
    a("buffer_store_dword v8, v4, s[40:43], 0 offen")
    stamp_reset(a, 2)
    stamp(a)
    if STAMP:
        a("s_waitcnt vmcnt(0)")
    stamp(a)
    stamp(a, True)
    stamp_flush(a, 0, 3, 40)
    a.label("prep_e_end")
    a("s_endpgm")
    return a


NKS = 23
DEPTH = 8
ACC0 = 64
A_B0 = 0
A_A0 = 160
SLAB = 3072
WREG = 40960
XOFF = 2 * SLAB


def tapoff(t):
    return ((t // 3) * 18 + (t % 3)) * 16


def acc(slot, n):
    r = ACC0 + (slot * 5 + n) * 4
    return f"v[{r}:{r+3}]"


def accr(slot, n):
    return ACC0 + (slot * 5 + n) * 4


def breg(ks, n):
    r = A_B0 + (ks % DEPTH) * 20 + n * 4
    return f"a[{r}:{r+3}]"


def areg(i):
    r = A_A0 + i * 4
    return f"a[{r}:{r+3}]"


def gen_conv(which):
    a = Asm()
    name = f"conv{which}_kernel"
    pfx = f"c{which}"
    a.label(name)
    a("s_cmp_ge_u32 s2, 256")
    a(f"s_cbranch_scc1 {pfx}_end")
    stamp(a, True)
    stamp(a)
    load_kernargs(a)
    S_W, S_NB, S_B, S_Y0, S_X0 = 3, 4, 5, 6, 7
    a("v_lshrrev_b32 v1, 6, v0")
    a("v_and_b32 v2, 63, v0")
    a(f"v_readfirstlane_b32 s{S_W}, v1")
    a(f"s_lshr_b32 s{S_NB}, s2, 6")
    a(f"s_bfe_u32 s{S_B}, s2, 0x10002")
    a("s_and_b32 s8, s2, 3")
    a("s_bfe_u32 s9, s2, 0x10005")
    a("s_lshl_b32 s8, s8, 4")
    a("s_lshl_b32 s9, s9, 3")
    a(f"s_add_u32 s{S_Y0}, s8, s9")
    a("s_bfe_u32 s9, s2, 0x20003")
    a(f"s_lshl_b32 s{S_X0}, s9, 4")
    S_LB = 8
    a(f"s_mul_i32 s{S_LB}, s{S_W}, {WREG}")
    a(f"s_sub_u32 s9, s{S_Y0}, 1")
    a(f"s_sub_u32 s10, s{S_X0}, 1")
    a(f"v_mov_b32 v10, {hex(OOB)}")
    for k in range(3):
        vq, vr, vc = 7, 8, 9
        a(f"v_add_u32 v{vq}, {64*k}, v2")
        a(f"v_mul_u32_u24 v{vr}, 3641, v{vq}")
        a(f"v_lshrrev_b32 v{vr}, 16, v{vr}")
        a(f"v_mul_u32_u24 v{vc}, 18, v{vr}")
        a(f"v_sub_u32 v{vc}, v{vq}, v{vc}")
        a(f"v_add_u32 v{vr}, s9, v{vr}")
        a(f"v_add_u32 v{vc}, s10, v{vc}")
        a(f"v_lshl_add_u32 v{4+k}, v{vr}, 6, v{vc}")
        a(f"v_lshlrev_b32 v{4+k}, 4, v{4+k}")
        a(f"v_max_u32 v{vr}, v{vr}, v{vc}")
        a(f"v_cmp_gt_u32 vcc, 64, v{vr}")
        a(f"v_cndmask_b32 v{4+k}, v10, v{4+k}, vcc")
        if k == 2:
            a(f"v_cmp_gt_u32 vcc, 180, v{vq}")
            a(f"v_cndmask_b32 v{4+k}, v10, v{4+k}, vcc")
    a("v_lshlrev_b32 v11, 4, v2")
    a("v_add_u32 v12, 4096, v11")
    S_AO = 9
    S_BO = 10
    a(f"s_mul_i32 s{S_AO}, s{S_B}, 40")
    a(f"s_mul_i32 s11, s{S_W}, 10")
    a(f"s_add_u32 s{S_AO}, s{S_AO}, s11")
    a(f"s_lshl_b32 s{S_AO}, s{S_AO}, 16")
    a(f"s_lshl_b32 s{S_BO}, s{S_NB}, 2")
    a(f"s_add_u32 s{S_BO}, s{S_BO}, s{S_W}")
    a(f"s_mul_i32 s{S_BO}, s{S_BO}, {NKS*5120}")
    a("s_waitcnt lgkmcnt(0)")
    SRD_A, SRD_W = 40, 44
    srd(a, SRD_A, P_WS, ACT_BYTES, A1_OFF if which == 1 else A2_OFF)
    srd(a, SRD_W, P_WS, WP_BYTES, WP1_OFF if which == 1 else WP2_OFF)

    def dma(sp, k):
        pos = sp + 2 if sp < 8 else sp - 8
        a(f"s_add_u32 m0, s{S_LB}, {pos*SLAB + k*1024}")
        a(f"s_add_u32 s11, s{S_AO}, {sp*65536}")
        a(f"buffer_load_dwordx4 v{4+k}, s[{SRD_A}:{SRD_A+3}], s11 offen lds", vm=f"d{sp}_{k}")

    def bload(ks, n):
        if n == 0:
            a(f"s_add_u32 s12, s{S_BO}, {ks*5120}")
        if n < 4:
            a(f"buffer_load_dwordx4 {breg(ks, n)}, v11, s[{SRD_W}:{SRD_W+3}], s12 offen offset:{n*1024}", vm=f"b{ks}")
        else:
            a(f"buffer_load_dwordx4 {breg(ks, n)}, v12, s[{SRD_W}:{SRD_W+3}], s12 offen", vm=f"b{ks}")

    TWICE = "--twice" in sys.argv
    if TWICE:
        a("s_mov_b32 s15, 0")
        a.label(f"{pfx}_again")
        stamp_reset(a, 1)
        stamp(a)
    for k in range(3):
        for sp in range(4):
            dma(sp, k)
        if k == 0:
            for n in range(5):
                bload(0, n)
    for n in range(5):
        bload(1, n)
    for n in range(5):
        bload(2, n)
    pending = []
    for sp in range(4, 8):
        for k in range(3):
            pending.append(("dma", sp, k))
    for ks in range(3, DEPTH):
        for n in range(5):
            pending.append(("b", ks, n))
    dm = [p for p in pending if p[0] == "dma"] + [("dma", sp, k) for sp in (8, 9) for k in range(3)]
    bb = [p for p in pending if p[0] == "b"]
    pending = bb[:10] + dm[:12] + bb[10:] + dm[12:]

    a("v_and_b32 v7, 15, v2")
    a("v_lshrrev_b32 v8, 4, v2")
    a("v_lshlrev_b32 v7, 4, v7")
    a(f"v_add_u32 v7, s{S_LB}, v7")
    a(f"v_mul_u32_u24 v9, {SLAB}, v8")
    a(f"v_add3_u32 v9, v9, v7, 0")
    a(f"v_add_u32 v9, {2*SLAB}, v9")
    a("v_and_b32 v13, 1, v8")
    a(f"v_mul_u32_u24 v13, {SLAB}, v13")
    a("v_add_u32 v13, v13, v7")
    a("v_lshrrev_b32 v8, 1, v8")
    a("v_lshl_add_u32 v14, v8, 4, v13")
    a("v_mul_u32_u24 v15, 288, v8")
    a("v_add_u32 v15, v15, v13")
    for jp in range(4):
        a(f"s_add_u32 s11, s{S_W}, {jp+1}")
        a("s_and_b32 s11, s11, 3")
        a("s_mul_i32 s11, s11, 576")
        a(f"v_add_u32 v{16+jp}, s11, v9")
        a(f"v_add_u32 v{20+jp}, s11, v14")
        a(f"v_add_u32 v{24+jp}, s11, v15")
        a(f"v_add_u32 v{28+jp}, s11, v13")
    a(f"s_add_u32 s11, s{S_LB}, {XOFF}")
    a("v_add_u32 v32, s11, v11")
    for jp in range(3):
        a(f"s_add_u32 s11, s{S_W}, {3-jp}")
        a("s_and_b32 s11, s11, 3")
        a(f"s_mul_i32 s11, s11, {WREG}")
        a(f"s_add_u32 s11, s11, {XOFF + jp*10240}")
        a(f"v_add_u32 v{33+jp}, s11, v11")

    def aread(ks, slot, dst):
        jp, r = slot // 2, slot % 2
        if ks < 18:
            t = ks % 9
            off = tapoff(t) + r * 288 + (4 * SLAB if ks >= 9 else 0)
            v = 16 + jp
        else:
            ta, tb = TAIL_PAIRS[ks - 18]
            off = tapoff(ta) + r * 288
            if tb is None:
                v = 28 + jp
            elif tapoff(tb) - tapoff(ta) == 16:
                v = 20 + jp
            else:
                assert tapoff(tb) - tapoff(ta) == 288
                v = 24 + jp
        a(f"ds_read_b128 {areg(dst)}, v{v} offset:{off}", lg=f"a{ks}_{slot}")

    def mfma(ks, slot, n, ai):
        c = "0" if ks == 0 else acc(slot, n)
        if which == 1:
            a(f"v_mfma_f32_16x16x32_bf16 {acc(slot, n)}, {breg(ks, n)}, {areg(ai)}, {c}")
        else:
            a(f"v_mfma_f32_16x16x32_bf16 {acc(slot, n)}, {areg(ai)}, {breg(ks, n)}, {c}")

    def do_pending():
        if pending:
            p = pending.pop(0)
            if p[0] == "dma":
                dma(p[1], p[2])
            elif p[0] == "b":
                bload(p[1], p[2])
            else:
                p[1]()

    S_EO = 13
    if which == 1:
        SRD_E, SRD_G, SRD_BE = 48, 52, 56
        srd(a, SRD_E, P_WS, EMB_BYTES, EMB_OFF)
        srd(a, SRD_G, P_G2, 640)
        srd(a, SRD_BE, P_B2, 640)
        a("v_lshrrev_b32 v3, 4, v2")
        a(f"s_mul_i32 s11, s{S_NB}, 80")
        a("v_lshl_add_u32 v3, v3, 2, s11")
        a("v_lshlrev_b32 v7, 1, v3")
        a(f"s_mul_i32 s11, s{S_B}, 320")
        a("v_add_u32 v3, s11, v3")
        a("v_lshlrev_b32 v3, 2, v3")
        EMBR = [224, 36]
        GAM = [244 + 2 * n for n in range(5)]
        BET = [56, 58, 60, 62, 254]

        def epi_loads():
            a(f"s_lshl_b32 s14, s{S_B}, 2")
            a(f"s_add_u32 s14, s14, s{S_NB}")
            epoch_load(a, 1, 14, 96, 14, 13, 15)
            a.vmq[-1] = "epi"
            for es in range(ES):
                for n in range(5):
                    r = EMBR[es] + 4 * n
                    a(f"buffer_load_dwordx4 v[{r}:{r+3}], v3, s[{SRD_E}:{SRD_E+3}], 0 offen offset:{es*2560 + n*64}", vm="epi")
            for n in range(5):
                a(f"buffer_load_dwordx2 v[{GAM[n]}:{GAM[n]+1}], v7, s[{SRD_G}:{SRD_G+3}], 0 offen offset:{n*32}", vm="epi")
                a(f"buffer_load_dwordx2 v[{BET[n]}:{BET[n]+1}], v7, s[{SRD_BE}:{SRD_BE+3}], 0 offen offset:{n*32}", vm="epi")
    else:
        SRD_X, SRD_O = 48, 52
        srd(a, SRD_X, P_X, X_BYTES)
        srd(a, SRD_O, P_OUT, X_BYTES)
        a("v_and_b32 v3, 15, v2")
        a("v_lshlrev_b32 v3, 13, v3")
        a("v_lshrrev_b32 v7, 4, v2")
        a("v_lshl_add_u32 v3, v7, 3, v3")
        a(f"s_mul_i32 s11, s{S_B}, 320")
        a(f"s_mul_i32 s14, s{S_NB}, 80")
        a("s_add_u32 s11, s11, s14")
        a("s_lshl_b32 s11, s11, 13")
        a(f"s_lshl_b32 s14, s{S_W}, 1")
        a(f"s_add_u32 s14, s14, s{S_Y0}")
        a("s_lshl_b32 s14, s14, 7")
        a("s_add_u32 s11, s11, s14")
        a(f"s_lshl_b32 s14, s{S_X0}, 1")
        a("s_add_u32 s11, s11, s14")
        a("v_add_u32 v3, s11, v3")
        for n in range(5):
            a(f"s_mov_b32 s{60+n}, {n*16*8192}")
        XR = 224

        def epi_loads():
            for r in range(2):
                for n in range(5):
                    d = XR + (r * 5 + n) * 2
                    a(f"buffer_load_dwordx2 v[{d}:{d+1}], v3, s[{SRD_X}:{SRD_X+3}], s{60+n} offen offset:{r*128}", vm="epi")

    stamp(a)
    a.wait(vm=[f"d{sp}_{k}" for sp in range(4) for k in range(3)])
    stamp(a)
    for slot in range(8):
        aread(0, slot, slot)
    for ks in range(18):
        a.comment(f"---- kstep {ks}")
        a.wait(vm=f"b{ks}")
        if ks in (1, 3, 9):
            stamp(a)
        if ks == 8:
            a.wait(vm=[f"d{sp}_{k}" for sp in range(4, 8) for k in range(3)])
        if ks == 17:
            a.wait(vm=[f"d{sp}_{k}" for sp in range(8, 10) for k in range(3)])
        nb = ks + DEPTH - 1
        if ks >= 1 and nb < NKS:
            for n in range(5):
                pending.append(("b", nb, n))
        if ks == 12:
            pending.append(("f", epi_loads))
        for slot in range(8):
            a.wait(lg=f"a{ks}_{slot}")
            for n in range(5):
                mfma(ks, slot, n, slot)
                if n in (1, 3):
                    do_pending()
            if ks < 17:
                aread(ks + 1, slot, slot)
            elif slot >= 3:
                pass
    while pending:
        do_pending()
    stamp(a)
    for u in range(5):
        aread(18 + u, 0, u)
    wr_pending = []
    for slot in range(8):
        st = (slot % 2) * 5
        nst = 5 - st
        if slot == 6:
            while wr_pending:
                wr_pending.pop(0)()
            a.wait_all(vm=False, lg=True)
            stamp(a)
            a("s_barrier")
            rd_pending = []
            for jp in range(3):
                for f in range(10):
                    r = accr(2 * jp, 0) + f * 4
                    rd_pending.append((f"ds_read_b128 v[{r}:{r+3}], v{33+jp} offset:{f*1024}", f"x{jp}"))
        cnt = 0
        for u in range(5):
            ks = 18 + u
            if slot == 0:
                a.wait(vm=f"b{ks}")
            a.wait(lg=f"a{ks}_{slot}")
            for n in range(5):
                mfma(ks, slot, n, st + u)
                cnt += 1
                if n == 0 and slot < 7:
                    aread(18 + u, slot + 1, nst + u)
                elif n == 2 and cnt > 8 and wr_pending:
                    wr_pending.pop(0)()
                elif n == 4 and cnt > 8 and wr_pending:
                    wr_pending.pop(0)()
                elif slot >= 6 and n >= 1 and rd_pending:
                    s, tg = rd_pending.pop(0)
                    a(s, lg=tg)
        if slot < 6:
            for n in range(5):
                def w(slot=slot, n=n):
                    a(f"ds_write_b128 v32, {acc(slot, n)} offset:{(slot*5+n)*1024}", lg="xw")
                wr_pending.append(w)
    while rd_pending:
        s, tg = rd_pending.pop(0)
        a(s, lg=tg)
    own = accr(6, 0)
    a.wait(lg=["x0", "x1"])
    for i in range(0, 40, 2):
        r0, r1 = accr(0, 0) + i, accr(2, 0) + i
        a(f"v_pk_add_f32 v[{r0}:{r0+1}], v[{r0}:{r0+1}], v[{r1}:{r1+1}]")
    a.wait(lg="x2")
    for i in range(0, 40, 2):
        r2 = accr(4, 0) + i
        a(f"v_pk_add_f32 v[{own+i}:{own+i+1}], v[{own+i}:{own+i+1}], v[{r2}:{r2+1}]")
    for i in range(0, 40, 2):
        r0 = accr(0, 0) + i
        a(f"v_pk_add_f32 v[{own+i}:{own+i+1}], v[{own+i}:{own+i+1}], v[{r0}:{r0+1}]")
    a.wait(vm="epi")
    stamp(a)
    if TWICE:
        a("s_barrier")
        a("s_add_u32 s15, s15, 1")
        a("s_cmp_lt_u32 s15, 2")
        a(f"s_cbranch_scc1 {pfx}_again")

    if which == 1:
        for n in range(5):
            for i in range(0, 4, 2):
                e0, e1 = EMBR[0] + 4 * n + i, EMBR[1] + 4 * n + i
                a(f"v_pk_add_f32 v[{e0}:{e0+1}], v[{e0}:{e0+1}], v[{e1}:{e1+1}]")
        for r in range(2):
            for n in range(5):
                for i in range(0, 4, 2):
                    h = accr(6 + r, n) + i
                    e0 = EMBR[0] + 4 * n + i
                    a(f"v_pk_add_f32 v[{h}:{h+1}], v[{h}:{h+1}], v[{e0}:{e0+1}]")
        a("v_mov_b32 v8, 0")
        a("v_mov_b32 v9, 0")
        a("v_mov_b32 v10, 0")
        a("v_mov_b32 v11, 0")
        for i in range(0, 40, 2):
            h = own + i
            a(f"v_pk_add_f32 v[8:9], v[8:9], v[{h}:{h+1}]")
            a(f"v_pk_fma_f32 v[10:11], v[{h}:{h+1}], v[{h}:{h+1}], v[10:11]")
        a("v_add_f32 v8, v8, v9")
        a("v_add_f32 v9, v10, v11")
        wave_reduce2(a, 8, 9)
        ST = WREG - 256
        a(f"s_lshl_b32 s11, s{S_W}, 3")
        a(f"s_add_u32 s11, s11, {ST}")
        a("v_mov_b32 v10, s11")
        a("s_mov_b32 exec_lo, 0")
        a("s_mov_b32 exec_hi, 0x80000000")
        a("ds_write_b64 v10, v[8:9]")
        a("s_mov_b64 exec, -1")
        a("s_waitcnt lgkmcnt(0)")
        a("s_barrier")
        a(f"s_cmp_lg_u32 s{S_W}, 0")
        a(f"s_cbranch_scc1 {pfx}_wait")
        a("v_mov_b32 v8, 0")
        a("v_mov_b32 v9, 0")
        a("v_lshlrev_b32 v10, 3, v2")
        a("s_mov_b64 exec, 0xf")
        a(f"ds_read_b64 v[8:9], v10 offset:{ST}")
        a("s_mov_b64 exec, -1")
        a("s_waitcnt lgkmcnt(0)")
        wave_reduce2(a, 8, 9, full=False)
        a("s_and_b32 s14, s2, 3")
        a("s_bfe_u32 s15, s2, 0x30003")
        a("s_lshl_b32 s14, s14, 3")
        a("s_add_u32 s14, s14, s15")
        group_barrier_stats(a, pfx, 8, 9, 16, 96, 14, 14, 60, ST + 128)
        a.label(f"{pfx}_wait")
        a("s_barrier")
        stamp(a)
        a(f"v_mov_b32 v10, {ST+128}")
        a("ds_read_b64 v[8:9], v10")
        SRD_O = 48
        srd(a, SRD_O, P_WS, ACT_BYTES, A2_OFF)
        a("v_lshrrev_b32 v3, 5, v2")
        a("v_lshlrev_b32 v3, 16, v3")
        a("v_and_b32 v7, 15, v2")
        a("v_lshl_add_u32 v3, v7, 4, v3")
        a("v_bfe_u32 v7, v2, 4, 1")
        a("v_lshl_add_u32 v3, v7, 3, v3")
        a(f"s_mul_i32 s11, s{S_B}, 40")
        a(f"s_mul_i32 s14, s{S_NB}, 10")
        a("s_add_u32 s11, s11, s14")
        a("s_lshl_b32 s11, s11, 16")
        a(f"s_lshl_b32 s14, s{S_W}, 1")
        a(f"s_add_u32 s14, s14, s{S_Y0}")
        a("s_lshl_b32 s14, s14, 10")
        a("s_add_u32 s11, s11, s14")
        a(f"s_lshl_b32 s14, s{S_X0}, 4")
        a("s_add_u32 s11, s11, s14")
        a("v_add_u32 v3, s11, v3")
        for n in range(5):
            a(f"s_mov_b32 s{60+n}, {n*2*65536}")
        a("s_waitcnt lgkmcnt(0)")
        SC, SH, SC2, SH2 = 64, 84, 104, 124
        for n in range(5):
            for i in range(4):
                k = 4 * n + i
                g, b = GAM[n] + i // 2, BET[n] + i // 2
                if i % 2 == 0:
                    a(f"v_lshlrev_b32 v{SC+k}, 16, v{g}")
                    a(f"v_lshlrev_b32 v{SH+k}, 16, v{b}")
                else:
                    a(f"v_and_b32 v{SC+k}, 0xffff0000, v{g}")
                    a(f"v_and_b32 v{SH+k}, 0xffff0000, v{b}")
                a(f"v_mul_f32 v{SC+k}, v{SC+k}, v9")
                a(f"v_fma_f32 v{SH+k}, -v8, v{SC+k}, v{SH+k}")
                a(f"v_mul_f32 v{SC2+k}, {f32(-LOG2E)}, v{SC+k}")
                a(f"v_mul_f32 v{SH2+k}, {f32(-LOG2E)}, v{SH+k}")
        for r in range(2):
            for n in range(5):
                h = accr(6 + r, n)
                t = 144 + 4 * ((r * 5 + n) % 4)
                for i in (0, 2):
                    k = 4 * n + i
                    a(f"v_pk_fma_f32 v[{t+i}:{t+i+1}], v[{h+i}:{h+i+1}], v[{SC2+k}:{SC2+k+1}], v[{SH2+k}:{SH2+k+1}]")
                    a(f"v_pk_fma_f32 v[{h+i}:{h+i+1}], v[{h+i}:{h+i+1}], v[{SC+k}:{SC+k+1}], v[{SH+k}:{SH+k+1}]")
                for i in range(4):
                    a(f"v_exp_f32 v{t+i}, v{t+i}")
                for i in (0, 2):
                    a(f"v_pk_add_f32 v[{t+i}:{t+i+1}], v[{t+i}:{t+i+1}], 1.0 op_sel_hi:[1,0]")
                for i in range(4):
                    a(f"v_rcp_f32 v{t+i}, v{t+i}")
                for i in (0, 2):
                    a(f"v_pk_mul_f32 v[{h+i}:{h+i+1}], v[{h+i}:{h+i+1}], v[{t+i}:{t+i+1}]")
                a(f"v_cvt_pk_bf16_f32 v{h}, v{h}, v{h+1}")
                a(f"v_cvt_pk_bf16_f32 v{h+1}, v{h+2}, v{h+3}")
                a(f"buffer_store_dwordx2 v[{h}:{h+1}], v3, s[{SRD_O}:{SRD_O+3}], s{60+n} offen offset:{r*1024}")
    else:
        for r in range(2):
            for n in range(5):
                h = accr(6 + r, n)
                d = XR + (r * 5 + n) * 2
                t = 64 + 4 * ((r * 5 + n) % 4)
                a(f"v_lshlrev_b32 v{t}, 16, v{d}")
                a(f"v_and_b32 v{t+1}, 0xffff0000, v{d}")
                a(f"v_lshlrev_b32 v{t+2}, 16, v{d+1}")
                a(f"v_and_b32 v{t+3}, 0xffff0000, v{d+1}")
                a(f"v_pk_add_f32 v[{h}:{h+1}], v[{h}:{h+1}], v[{t}:{t+1}]")
                a(f"v_pk_add_f32 v[{h+2}:{h+3}], v[{h+2}:{h+3}], v[{t+2}:{t+3}]")
                a(f"v_cvt_pk_bf16_f32 v{h}, v{h}, v{h+1}")
                a(f"v_cvt_pk_bf16_f32 v{h+1}, v{h+2}, v{h+3}")
                a(f"buffer_store_dwordx2 v[{h}:{h+1}], v3, s[{SRD_O}:{SRD_O+3}], s{60+n} offen offset:{r*128}")
    stamp(a)
    if STAMP:
        a("s_waitcnt vmcnt(0)")
    stamp(a)
    stamp(a, True)
    stamp_flush(a, which, S_W, 4)
    a.label(f"{pfx}_end")
    a("s_endpgm")
    return a


HEADER = """; ADM resblock (GN+SiLU+conv3x3 x2 + emb + residual) for gfx950; generated by dev/gen.py
; @launch kernel=prep_kernel grid=({k1grid},1,1) block=(640,1,1) lds=23808
; @launch kernel=conv1_kernel grid=(256,1,1) block=(256,1,1) lds=163840
; @launch kernel=conv2_kernel grid=(256,1,1) block=(256,1,1) lds=163840
.amdgcn_target "amdgcn-amd-amdhsa--gfx950"
.text
"""

KD = """.amdhsa_kernel {name}
  .amdhsa_next_free_vgpr {vgpr}
  .amdhsa_next_free_sgpr 100
  .amdhsa_accum_offset {accum}
  .amdhsa_group_segment_fixed_size 0
  .amdhsa_kernarg_size 96
  .amdhsa_user_sgpr_count 2
  .amdhsa_user_sgpr_kernarg_segment_ptr 1
  .amdhsa_system_sgpr_workgroup_id_x 1
.end_amdhsa_kernel
"""


def main():
    out = HEADER.format(k1grid=K1_GRID)
    kernels = [("prep_kernel", gen_prep(), 64, 64),
               ("conv1_kernel", gen_conv(1), 456, 256),
               ("conv2_kernel", gen_conv(2), 456, 256)]
    for name, a, _, _ in kernels:
        out += f".globl {name}\n.p2align 8\n.type {name},@function\n"
        out += a.finalize()
        print(name, "nops inserted:", len(a.inserted), file=sys.stderr)
        if "-v" in sys.argv:
            for n, l in a.inserted:
                print("   ", n, l, file=sys.stderr)
    out += '.section .rodata,"a"\n'
    for name, _, vgpr, accum in kernels:
        out += ".p2align 6\n" + KD.format(name=name, vgpr=vgpr, accum=accum)
    path = sys.argv[1] if len(sys.argv) > 1 and not sys.argv[1].startswith("-") else \
        "standalone__adm_resblock__diffusion.s"
    open(path, "w").write(out)


if __name__ == "__main__":
    main()
```
